```python
import torch

def _softmax(x, axis=-1):
    return torch.softmax(x, dim=axis)
def _gelu(x):
    return torch.nn.functional.gelu(x, approximate="tanh")
def _silu(x):
    return torch.nn.functional.silu(x)
def _sigmoid(x):
    return torch.sigmoid(x)
def _layernorm(x, axis=-1, eps=1e-5):
    m = x.mean(dim=axis, keepdim=True)
    v = x.var(dim=axis, keepdim=True, unbiased=False)
    return (x - m) / torch.sqrt(v + eps)
def _scatter_add(tgt, idx, src, axis=0):
    return tgt.clone().index_add_(axis, idx, src)
def _segment_sum(src, seg, n):
    out = torch.zeros((n,) + src.shape[1:], dtype=src.dtype)
    return out.index_add_(0, seg, src)
def _pad(x, pw):
    flat = tuple(v for pair in reversed(pw) for v in pair)
    return torch.nn.functional.pad(x, flat)

kernel_name = 'standalone__hybrid_graph_tf_graphgps__graph'

def setup_inputs():

    _w = (lambda a: (lambda t: t.to(torch.bfloat16) if t.is_floating_point() else t)(torch.as_tensor(a)))
    N, deg, D = 12500, 64, 64
    E = N * deg
    src = (lambda lo, hi, *s: torch.randint(lo, hi, s))(0, N, E).to(torch.int64)
    dst = (lambda lo, hi, *s: torch.randint(lo, hi, s))(0, N, E).to(torch.int64)
    deg_cnt = torch.bincount(dst, minlength=N).to(float) + 1.0
    sc = 1.0 / float(D) ** 0.5
    return {
        "x": _w((lambda *s: torch.randn(*s, dtype=torch.bfloat16) * 0.05)(N, D)),
        "src": _w(src),
        "dst": _w(dst),
        "deg_inv": _w((1.0 / deg_cnt).to(float)),
        "w_msg": _w((lambda *s: torch.randn(*s, dtype=torch.bfloat16) * 0.4)(D, D) * sc),
        "wq": _w((lambda *s: torch.randn(*s, dtype=torch.bfloat16) * 1.6)(D, D) * sc),
        "wk": _w((lambda *s: torch.randn(*s, dtype=torch.bfloat16) * 1.6)(D, D) * sc),
        "wv": _w((lambda *s: torch.randn(*s, dtype=torch.bfloat16) * 0.2)(D, D) * sc),
        "w_out": _w((lambda *s: torch.randn(*s, dtype=torch.bfloat16) * 0.2)(D, D) * sc),
    }

def reference(x, src, dst, deg_inv, w_msg, wq, wk, wv, w_out):
    N, D = x.shape[0], x.shape[1]
    h = _layernorm(x, axis=-1)
    m_e = torch.einsum('nd,de->ne', h, w_msg)
    h_local = _segment_sum(m_e[src], dst, N) * deg_inv[:, None]
    q = torch.einsum('nd,de->ne', h, wq)
    k = torch.einsum('nd,de->ne', h, wk)
    v = torch.einsum('nd,de->ne', h, wv)
    logits = torch.einsum('id,jd->ij', q, k) / (float(D) ** 0.5)
    attn = _softmax(logits, axis=-1)
    h_global = torch.einsum('ij,jd->id', attn, v)
    y = torch.einsum('nd,de->ne', h_local + h_global, w_out)
    return x + y
```

```python
import re

TRANS = ("v_exp_f32", "v_log_f32", "v_rcp_f32", "v_rsq_f32", "v_sqrt_f32", "v_sin_f32", "v_cos_f32",
         "v_exp_f16", "v_rcp_f16", "v_rsq_f16", "v_rcp_iflag_f32")

def _regs(tok):
    tok = tok.strip()
    tok = tok.replace("-", "").replace("|", "") if tok.startswith("-") or tok.startswith("|") else tok
    m = re.fullmatch(r"abs\((.*)\)", tok)
    if m: tok = m.group(1)
    m = re.fullmatch(r"([vsa])(\d+)", tok)
    if m: return {(m.group(1), int(m.group(2)))}
    m = re.fullmatch(r"([vsa])\[(\d+):(\d+)\]", tok)
    if m: return {(m.group(1), i) for i in range(int(m.group(2)), int(m.group(3)) + 1)}
    if tok == "vcc": return {("s", "vcc")}
    if tok == "exec": return {("s", "exec")}
    if tok == "m0": return {("s", "m0")}
    return set()

class Ins:
    def __init__(self, text):
        self.text = text
        t = text.split(";")[0].strip()
        parts = t.split(None, 1)
        self.mn = parts[0]
        rest = parts[1] if len(parts) > 1 else ""
        ops = []; depth = 0; cur = ""
        for ch in rest:
            if ch in "[(": depth += 1
            if ch in "])": depth -= 1
            if ch == "," and depth == 0:
                ops.append(cur.strip()); cur = ""
            else:
                cur += ch
        if cur.strip(): ops.append(cur.strip())
        self.mods = ""
        if ops:
            sp = ops[-1].split(None, 1)
            ops[-1] = sp[0]
            if len(sp) > 1: self.mods = sp[1]
        self.ops = ops
        mn = self.mn
        self.is_mfma = mn.startswith("v_mfma")
        self.is_valu = mn.startswith("v_") and not self.is_mfma
        self.is_ds = mn.startswith("ds_")
        self.is_vmem = mn.startswith(("buffer_", "global_"))
        self.is_salu = mn.startswith("s_")
        self.is_trans = any(mn.startswith(x) for x in TRANS)
        self.is_dpp = "dpp" in mn or "row_" in self.mods or "quad_perm" in self.mods
        self.is_permlane = mn.startswith("v_permlane")
        self.passes = 0
        if self.is_mfma:
            self.passes = 8 if "32x32" in mn else 4
        R = [_regs(o) for o in ops]
        w = set(); r = set()
        self.srcC = set(); self.srcAB = set(); self.stdata = set()
        if self.is_mfma:
            w = R[0]; self.srcAB = R[1] | R[2]; self.srcC = R[3]; r = self.srcAB | self.srcC
        elif self.is_valu:
            if self.is_permlane:
                w = R[0] | R[1]; r = R[0] | R[1]
            elif mn.startswith("v_cmpx"):
                w = R[0] | {("s", "exec")}; r = set().union(*R[1:])
            elif mn.startswith(("v_add_co", "v_sub_co", "v_addc_co", "v_subb_co", "v_mad_u64")):
                w = R[0] | R[1]; r = set().union(*R[2:])
            else:
                w = R[0]; r = set().union(*R[1:]) if len(R) > 1 else set()
                if mn.startswith(("v_fmac", "v_dot2c", "v_writelane")) or "dst_unused:UNUSED_PRESERVE" in self.mods or self.is_dpp:
                    r |= R[0]
                if mn.startswith("v_cndmask") and len(R) == 3: r |= {("s", "vcc")}
        elif self.is_ds:
            if mn.startswith(("ds_read", "ds_bpermute", "ds_permute", "ds_swizzle")) or "_rtn" in mn:
                w = R[0]; r = set().union(*R[1:]) if len(R) > 1 else set()
            else:
                r = set().union(*R)
        elif self.is_vmem:
            if "load" in mn and "lds" not in self.mods.split() and "lds" not in mn:
                w = R[0]; r = set().union(*R[1:])
            elif "store" in mn:
                r = set().union(*R)
                if "x3" in mn or "x4" in mn: self.stdata = R[0]
            else:
                r = set().union(*R)
                if "lds" in self.mods.split() or "lds" in mn: r |= {("s", "m0")}
        elif self.is_salu:
            if mn.startswith(("s_cmp", "s_cbranch", "s_branch", "s_waitcnt", "s_nop", "s_barrier", "s_setprio", "s_endpgm", "s_bitcmp", "s_sleep")):
                r = set().union(*R) if R else set()
            else:
                w = R[0] if R else set(); r = set().union(*R[1:]) if len(R) > 1 else set()
                if "saveexec" in mn: w |= {("s", "exec")}
        self.w = w; self.r = r
        self.states = 1
        if mn == "s_nop": self.states = int(ops[0], 0) + 1

def need(p, c):
    n = 0
    pv = {x for x in p.w if x[0] in "va"}
    ps = {x for x in p.w if x[0] == "s"}
    if p.is_mfma:
        tbl = {4: 8, 8: 12}[p.passes]
        if c.is_mfma:
            if pv & c.srcAB: n = max(n, tbl)
            if pv & c.srcC:
                if not (pv == c.srcC and p.passes == c.passes): n = max(n, {4: 6, 8: 10}[p.passes])
            elif pv & c.w: n = max(n, {4: 6, 8: 10}[p.passes])
        else:
            if pv & (c.r | c.w): n = max(n, tbl)
        if c.is_valu and (p.srcC & c.w): n = max(n, {4: 3, 8: 7}[p.passes])
    if p.is_valu:
        if c.is_mfma and (pv & c.r): n = max(n, 2)
        if c.is_mfma and ("s", "exec") in ps: n = max(n, 4)
        if c.is_valu and c.is_dpp and (pv & c.r): n = max(n, 2)
        if c.is_valu and c.is_dpp and ("s", "exec") in ps: n = max(n, 5)
        if c.is_permlane and (pv & c.r): n = max(n, 2)
        if c.is_permlane and ("s", "exec") in ps: n = max(n, 4)
        if c.mn.startswith(("v_readlane", "v_readfirstlane")) and (pv & c.r): n = max(n, 1)
        if c.mn.startswith(("v_readlane", "v_readfirstlane", "v_writelane")) and ("s", "exec") in ps: n = max(n, 4)
        if c.mn.startswith(("v_readlane", "v_writelane")) and (ps & c.r): n = max(n, 4)
        if p.is_trans and c.is_valu and not c.is_trans and (pv & (c.r | c.w)): n = max(n, 1)
        if p.is_trans and (c.is_mfma or c.is_ds or c.is_vmem or c.is_trans) and (pv & c.r): n = max(n, 2 if c.is_mfma else 1)
        if c.is_valu and ((ps - {("s", "exec")}) & c.r): n = max(n, 2)
        if c.is_valu and ("s", "exec") in ps and ("s", "exec") in c.r: n = max(n, 2)
        if c.is_vmem and (ps & c.r): n = max(n, 5)
        if c.is_salu and (ps & c.r): n = max(n, 1)
        if "sdwa" in p.mn or "op_sel" in p.mods:
            if c.is_valu and (pv & (c.r | c.w)): n = max(n, 1)
    if p.is_salu and ("s", "m0") in ps and ("s", "m0") in c.r: n = max(n, 1)
    if p.stdata and (p.stdata & c.w): n = max(n, 2)
    return n

class Asm:
    def __init__(self):
        self.items = []
        self.padded = 0
    def __call__(self, text):
        for line in text.split("\n"):
            s = line.split(";")[0].strip()
            if not s:
                continue
            if s.endswith(":"):
                self.items.append(("l", s))
            elif s.startswith("."):
                self.items.append(("t", s))
            else:
                self.items.append(("i", Ins(line.strip())))
    def label(self, name):
        self.items.append(("l", name + ":"))
    def raw(self, text):
        self.items.append(("t", text))
    def text(self, pad=True, report=None):
        out = []
        hist = []
        for kind, it in self.items:
            if kind == "l":
                out.append(it); continue
            if kind == "t":
                out.append(it); continue
            if pad:
                short = 0; why = None
                for p, d in hist:
                    n = need(p, it) - d
                    if n > short: short = n; why = p
                if short > 0:
                    if report is not None: report.append((why.text, it.text, short))
                    self.padded += 1
                    k = short
                    while k > 0:
                        m = min(k, 16)
                        out.append("    s_nop %d" % (m - 1)); k -= m
                    for h in hist: h[1] += short
            out.append("    " + it.text)
            for h in hist: h[1] += it.states
            hist.append([it, 0])
            hist = [h for h in hist if h[1] < 20]
            if it.mn in ("s_branch", "s_endpgm"):
                hist = []
        return "\n".join(out) + "\n"
```

```python
from asmlib import Asm
N = 12500
NT32 = 391
HI, QF, T16, HL, WF, PL, BINS, PO = 0x0, 0x190000, 0x320000, 0x4B0000, 0x640000, 0x650000, 0x690000, 0xAC0000
NCHUNK = 250
CHUNK_E = 3200
CHUNK_B = 17408
NBIN = 196
QROWS = 12544
LOG2E = 1.4426950408889634
import struct
def f32bits(x): return struct.unpack("<I", struct.pack("<f", x))[0]

def srd(a, d, lo, hi, off, nrec, stride=0):
    if off == 0:
        a(f"s_mov_b32 s{d}, s{lo}")
        a(f"s_mov_b32 s{d+1}, s{hi}")
    else:
        a(f"s_add_u32 s{d}, s{lo}, {off if isinstance(off,str) else hex(off)}")
        a(f"s_addc_u32 s{d+1}, s{hi}, 0")
    if stride:
        a(f"s_or_b32 s{d+1}, s{d+1}, {hex(stride << 16)}")
    a(f"s_mov_b32 s{d+2}, {nrec if isinstance(nrec,str) else hex(nrec)}")
    a(f"s_mov_b32 s{d+3}, 0x00020000")

def kd(name, vgpr, sgpr=96):
    acc = (vgpr + 3) // 4 * 4
    return f""".amdhsa_kernel {name}
  .amdhsa_next_free_vgpr {vgpr}
  .amdhsa_next_free_sgpr {sgpr}
  .amdhsa_accum_offset {acc}
  .amdhsa_group_segment_fixed_size 0
  .amdhsa_kernarg_size 96
  .amdhsa_user_sgpr_count 2
  .amdhsa_user_sgpr_kernarg_segment_ptr 1
  .amdhsa_system_sgpr_workgroup_id_x 1
.end_amdhsa_kernel
"""

def header(a, name):
    a.raw(f".globl {name}")
    a.raw(".p2align 8")
    a.raw(f".type {name},@function")
    a.label(name)

def vr(b, n): return f"v[{b}:{b+n-1}]"
def sr(b, n): return f"s[{b}:{b+n-1}]"

def allreduce_halves(a, v, t):
    a(f"v_mov_b32 v{t}, v{v}")
    a(f"v_permlane32_swap_b32 v{v}, v{t}")
    a(f"v_add_f32 v{v}, v{v}, v{t}")
def allreduce_rows(a, v, t):
    a(f"v_mov_b32 v{t}, v{v}")
    a(f"v_permlane16_swap_b32 v{v}, v{t}")
    a(f"v_add_f32 v{v}, v{v}, v{t}")

TSC = 204.0
TBIAS = 1632
```

```python
from common import *
NLN = 196
K1_GRID = NCHUNK + NLN + 1
K1_LDS = 20480

def gen_k1(a):
    header(a, "prep_kernel")
    a(f"""
    s_cmp_ge_u32 s2, {K1_GRID}
    s_cbranch_scc1 K1_END
    s_load_dwordx16 s[16:31], s[0:1], 0
    s_load_dwordx8 s[32:39], s[0:1], 64
    s_cmp_ge_u32 s2, {NCHUNK}
    s_cbranch_scc1 K1_NOTBIN
    """)
    a(f"""
    v_lshlrev_b32 v1, 4, v0
    v_add_u32 v2, 6400, v1
    v_lshlrev_b32 v3, 2, v0
    v_mov_b32 v4, 0
    v_mov_b32 v5, 1
    s_mul_i32 s3, s2, {CHUNK_E*4}
    ds_write_b32 v3, v4
    s_waitcnt lgkmcnt(0)
    """)
    srd(a, 4, 20, 21, 0, 3200000)
    srd(a, 8, 18, 19, 0, 3200000)
    a(f"s_mul_i32 s40, s2, {CHUNK_B}")
    a(f"s_add_u32 s40, s40, {hex(BINS)}")
    srd(a, 12, 38, 39, "s40", CHUNK_B)
    a(f"""
    v_cmp_gt_u32 vcc, 200, v0
    s_and_saveexec_b64 s[42:43], vcc
    buffer_load_dwordx4 v[8:11], v1, s[4:7], s3 offen
    buffer_load_dwordx4 v[12:15], v1, s[4:7], s3 offen offset:3200
    buffer_load_dwordx4 v[16:19], v2, s[4:7], s3 offen
    buffer_load_dwordx4 v[20:23], v2, s[4:7], s3 offen offset:3200
    buffer_load_dwordx4 v[24:27], v1, s[8:11], s3 offen
    buffer_load_dwordx4 v[28:31], v1, s[8:11], s3 offen offset:3200
    buffer_load_dwordx4 v[32:35], v2, s[8:11], s3 offen
    buffer_load_dwordx4 v[36:39], v2, s[8:11], s3 offen offset:3200
    s_barrier
    """)
    for q in range(4):
        a(f"s_waitcnt vmcnt({7-q})")
        for j in range(4):
            e = q*4 + j
            a(f"v_lshrrev_b32 v{40+e}, 4, v{8+e}")
            a(f"v_and_b32 v{40+e}, 0x3fc, v{40+e}")
            a(f"ds_add_rtn_u32 v{56+e}, v{40+e}, v5")
    a(f"""
    s_mov_b64 exec, s[42:43]
    s_waitcnt lgkmcnt(0)
    s_barrier
    ds_read_b32 v6, v3
    s_waitcnt lgkmcnt(0)
    v_add_u32 v7, 3, v6
    v_and_b32 v7, 0xfffffffc, v7
    v_mov_b32 v72, v7
    """)
    for sh in (1, 2, 4, 8):
        a(f"v_add_u32_dpp v72, v72, v72 row_shr:{sh} row_mask:0xf bank_mask:0xf bound_ctrl:0")
    a("v_add_u32_dpp v72, v72, v72 row_bcast:15 row_mask:0xa bank_mask:0xf")
    a("v_add_u32_dpp v72, v72, v72 row_bcast:31 row_mask:0xc bank_mask:0xf")
    a(f"""
    v_lshrrev_b32 v73, 6, v0
    v_lshlrev_b32 v73, 2, v73
    v_and_b32 v74, 63, v0
    v_cmp_eq_u32 vcc, 63, v74
    s_and_saveexec_b64 s[44:45], vcc
    ds_write_b32 v73, v72 offset:2048
    s_mov_b64 exec, s[44:45]
    s_waitcnt lgkmcnt(0)
    s_barrier
    ds_read_b128 v[76:79], v4 offset:2048
    v_sub_u32 v72, v72, v7
    s_waitcnt lgkmcnt(0)
    v_cmp_lt_u32 vcc, 63, v0
    v_cndmask_b32 v76, 0, v76, vcc
    v_cmp_lt_u32 vcc, 127, v0
    v_cndmask_b32 v77, 0, v77, vcc
    v_cmp_lt_u32 vcc, 191, v0
    v_cndmask_b32 v78, 0, v78, vcc
    v_add3_u32 v72, v72, v76, v77
    v_add_u32 v72, v72, v78
    ds_write_b32 v3, v72 offset:1024
    v_lshl_or_b32 v75, v6, 16, v72
    buffer_store_dword v75, v3, s[12:15], 0 offen
    s_waitcnt lgkmcnt(0)
    s_barrier
    v_cmp_gt_u32 vcc, 200, v0
    s_and_saveexec_b64 s[42:43], vcc
    """)
    for e in range(16):
        a(f"ds_read_b32 v{40+e}, v{40+e} offset:1024")
    a("s_waitcnt vmcnt(1)")
    for e in range(16):
        a(f"v_lshl_or_b32 v{24+e}, v{8+e}, 18, v{24+e}")
    for e in range(16):
        a(f"s_waitcnt lgkmcnt({15-e})")
        a(f"v_add_lshl_u32 v{40+e}, v{40+e}, v{56+e}, 2")
    for e in range(16):
        a(f"ds_write_b32 v{40+e}, v{24+e} offset:4096")
    a(f"""
    s_mov_b64 exec, s[42:43]
    s_waitcnt lgkmcnt(0)
    s_barrier
    """)
    for i in range(4):
        a(f"ds_read_b128 v[{8+4*i}:{11+4*i}], v1 offset:{4096+4096*i}")
    a("v_add_u32 v2, 0x2000, v1")
    for i in range(4):
        a(f"s_waitcnt lgkmcnt({3-i})")
        base = "v1" if i < 2 else "v2"
        if i % 2 == 0:
            a(f"buffer_store_dwordx4 v[{8+4*i}:{11+4*i}], {base}, s[12:15], 0 offen offset:1024")
        else:
            a(f"s_movk_i32 s3, 0x1000")
            a(f"buffer_store_dwordx4 v[{8+4*i}:{11+4*i}], {base}, s[12:15], s3 offen offset:1024")
    a("s_endpgm")

    a.label("K1_NOTBIN")
    a(f"""
    s_cmp_eq_u32 s2, {NCHUNK+NLN}
    s_cbranch_scc1 K1_WPREP
    v_and_b32 v1, 15, v0            ; n
    v_bfe_u32 v2, v0, 4, 2          ; g
    v_lshrrev_b32 v3, 6, v0         ; wave
    s_sub_u32 s3, s2, {NCHUNK}
    s_lshl_b32 s3, s3, 6
    v_lshlrev_b32 v4, 4, v3
    v_add3_u32 v4, v4, v1, s3       ; R = row
    v_lshlrev_b32 v5, 7, v4
    v_lshl_add_u32 v5, v2, 4, v5    ; R*128 + g*16
    v_lshlrev_b32 v6, 4, v0
    s_waitcnt lgkmcnt(0)
    """)
    srd(a, 4, 16, 17, 0, N*128)
    srd(a, 8, 26, 27, 0, 8192)
    srd(a, 12, 28, 29, 0, 8192)
    a(f"""
    buffer_load_dwordx4 v[16:19], v5, s[4:7], 0 offen
    buffer_load_dwordx4 v[20:23], v5, s[4:7], 0 offen offset:64
    s_movk_i32 s40, 0x1000
    buffer_load_dwordx4 v[24:27], v6, s[8:11], 0 offen
    buffer_load_dwordx4 v[28:31], v6, s[8:11], s40 offen
    """)
    a(f"""
    v_lshrrev_b32 v7, 2, v1
    v_lshlrev_b32 v7, 3, v7
    v_and_b32 v8, 3, v1
    v_add_u32 v7, v7, v8
    v_lshlrev_b32 v7, 7, v7
    v_lshl_add_u32 v7, v2, 4, v7
    """)
    WK = 64
    for t2 in range(4):
        for kk in range(2):
            off = (4*(t2 & 1))*128 + kk*64
            so = "s40" if (t2 >> 1) else "0"
            b = WK + (t2*2+kk)*4
            a(f"buffer_load_dwordx4 {vr(b,4)}, v7, s[12:15], {so} offen offset:{off}")
    srd(a, 44, 38, 39, HI, NT32*4096)
    srd(a, 48, 38, 39, QF, NT32*4096)
    srd(a, 52, 38, 39, T16, NT32*4096)
    a(f"""
    v_bfe_u32 v8, v4, 1, 1
    v_lshlrev_b32 v8, 2, v8
    v_bfe_u32 v9, v4, 2, 2
    v_or_b32 v8, v8, v9              ; f(R)
    v_xor_b32 v9, v2, v8             ; chunk g ^ f
    v_xor_b32 v10, 4, v9             ; chunk (4+g) ^ f
    v_lshlrev_b32 v11, 7, v4
    v_lshl_add_u32 v9, v9, 4, v11
    v_lshl_add_u32 v10, v10, 4, v11
    v_lshrrev_b32 v11, 5, v4
    v_lshlrev_b32 v11, 12, v11       ; qtile*4096
    v_and_b32 v12, 31, v4
    v_lshl_add_u32 v11, v12, 4, v11  ; + (R&31)*16
    v_lshrrev_b32 v12, 1, v2
    v_lshl_add_u32 v11, v12, 10, v11 ; + (g>>1)*1024
    v_and_b32 v12, 1, v2
    v_lshl_add_u32 v11, v12, 9, v11
    v_bfe_u32 v12, v0, 2, 2          ; rr
    v_lshl_add_u32 v12, v2, 3, v12   ; 8g+rr
    v_lshlrev_b32 v12, 7, v12
    v_and_b32 v13, 3, v0
    v_lshl_add_u32 v12, v13, 4, v12
    v_mov_b32 v14, 0x3f800000
    v_cmp_gt_u32 vcc, {N}, v4
    v_cndmask_b32 v14, 0, v14, vcc
    s_waitcnt vmcnt(8)
    ds_write_b128 v6, v[24:27]
    ds_write_b128 v6, v[28:31] offset:4096
    """)
    X = 32
    for i in range(8):
        a(f"v_lshlrev_b32 v{X+2*i}, 16, v{16+i}")
        a(f"v_and_b32 v{X+2*i+1}, 0xffff0000, v{16+i}")
    a(f"s_waitcnt lgkmcnt(0)")
    a(f"s_barrier")
    WQ = 96
    for t in range(4):
        for kk in range(2):
            for b in range(2):
                off = (32*kk + 4*b)*128 + (t >> 1)*64 + (t & 1)*8
                d = WQ + (t*2+kk)*4 + 2*b
                a(f"ds_read_b64_tr_b16 {vr(d,2)}, v12 offset:{off}")
    a(f"v_add_f32 v48, v{X}, v{X+1}")
    a(f"v_add_f32 v49, v{X+2}, v{X+3}")
    for i in range(4, 16, 2):
        a(f"v_add_f32 v48, v48, v{X+i}")
        a(f"v_add_f32 v49, v49, v{X+i+1}")
    a("v_add_f32 v48, v48, v49")
    allreduce_rows(a, 48, 49)
    allreduce_halves(a, 48, 49)
    a(f"v_mul_f32 v48, {hex(f32bits(1/64))}, v48")
    for i in range(16):
        a(f"v_sub_f32 v{X+i}, v{X+i}, v48")
    a(f"v_mul_f32 v48, v{X}, v{X}")
    a(f"v_mul_f32 v49, v{X+1}, v{X+1}")
    for i in range(2, 16, 2):
        a(f"v_fmac_f32 v48, v{X+i}, v{X+i}")
        a(f"v_fmac_f32 v49, v{X+i+1}, v{X+i+1}")
    a("v_add_f32 v48, v48, v49")
    allreduce_rows(a, 48, 49)
    allreduce_halves(a, 48, 49)
    a(f"s_mov_b32 s41, {hex(f32bits(1/64))}")
    a(f"v_mov_b32 v49, {hex(f32bits(1e-5))}")
    a(f"v_fma_f32 v48, v48, s41, v49")
    a(f"v_rsq_f32 v48, v48")
    for i in range(16):
        a(f"v_mul_f32 v{X+i}, v{X+i}, v48")
    HB = 16
    for i in range(8):
        a(f"v_cvt_pk_bf16_f32 v{HB+i}, v{X+2*i}, v{X+2*i+1}")
    for i in range(8):
        a(f"v_cvt_pk_f16_f32 v{24+i}, v{X+2*i}, v{X+2*i+1}")
    a("s_waitcnt lgkmcnt(0)")
    for t in range(4):
        a(f"v_mfma_f32_16x16x32_bf16 {vr(32+4*t,4)}, {vr(WQ+(t*2)*4,4)}, {vr(HB,4)}, 0")
    for t in range(4):
        a(f"v_mfma_f32_16x16x32_bf16 {vr(32+4*t,4)}, {vr(WQ+(t*2+1)*4,4)}, {vr(HB+4,4)}, {vr(32+4*t,4)}")
    a(f"""
    buffer_store_dwordx4 v[24:27], v5, s[52:55], 0 offen
    buffer_store_dwordx4 v[28:31], v5, s[52:55], 0 offen offset:64
    buffer_store_dwordx4 v[16:19], v9, s[44:47], 0 offen
    v_and_b32 v50, 0xffff, v23
    v_or_b32 v50, v50, v14
    v_cmp_eq_u32 vcc, 3, v2
    v_cndmask_b32 v23, v23, v50, vcc
    buffer_store_dwordx4 v[20:23], v10, s[44:47], 0 offen
    """)
    for i in range(8):
        a(f"v_cvt_pk_bf16_f32 v{52+i}, v{32+2*i}, v{33+2*i}")
    a("s_waitcnt vmcnt(4)")
    Q2 = 96
    for t in range(4):
        a(f"v_mfma_f32_16x16x32_bf16 {vr(Q2+4*t,4)}, {vr(WK+(t*2)*4,4)}, v[52:55], 0")
    for t in range(4):
        a(f"v_mfma_f32_16x16x32_bf16 {vr(Q2+4*t,4)}, {vr(WK+(t*2+1)*4,4)}, v[56:59], {vr(Q2+4*t,4)}")
    a(f"v_mul_f32 v48, v{Q2}, v{Q2}")
    a(f"v_mul_f32 v49, v{Q2+1}, v{Q2+1}")
    for i in range(2, 16, 2):
        a(f"v_fmac_f32 v48, v{Q2+i}, v{Q2+i}")
        a(f"v_fmac_f32 v49, v{Q2+i+1}, v{Q2+i+1}")
    a("v_add_f32 v48, v48, v49")
    a(f"v_cndmask_b32 v50, 0, v{Q2+15}, vcc")
    allreduce_rows(a, 48, 49)
    allreduce_rows(a, 50, 51)
    allreduce_halves(a, 48, 49)
    allreduce_halves(a, 50, 51)
    c = LOG2E / 8
    a(f"""
    v_sqrt_f32 v48, v48
    s_mov_b32 s41, {hex(f32bits(c))}
    s_mov_b32 s42, {hex(f32bits(-c*8.1))}
    v_mov_b32 v49, {hex(f32bits(64.0))}
    v_mul_f32 v50, s41, v50
    v_fma_f32 v48, v48, s42, v49      ; -shift
    """)
    for i in range(16):
        a(f"v_fma_f32 v{Q2+i}, v{Q2+i}, s41, -v50")
    a(f"v_cndmask_b32 v{Q2+15}, v{Q2+15}, v48, vcc")
    for i in range(8):
        a(f"v_cvt_pk_bf16_f32 v{52+i}, v{Q2+2*i}, v{Q2+2*i+1}")
    a(f"""
    buffer_store_dwordx4 v[52:55], v11, s[48:51], 0 offen
    buffer_store_dwordx4 v[56:59], v11, s[48:51], 0 offen offset:2048
    s_endpgm
    """)

    a.label("K1_WPREP")
    a(f"""
    v_lshrrev_b32 v3, 6, v0
    v_and_b32 v1, 63, v0
    v_readfirstlane_b32 s3, v3
    v_lshlrev_b32 v6, 4, v0
    s_waitcnt lgkmcnt(0)
    """)
    srd(a, 4, 32, 33, 0, 8192)
    a(f"""
    s_movk_i32 s40, 0x1000
    buffer_load_dwordx4 v[24:27], v6, s[4:7], 0 offen
    buffer_load_dwordx4 v[28:31], v6, s[4:7], s40 offen
    s_cmp_ge_u32 s3, 2
    s_cselect_b32 s8, s24, s30
    s_cselect_b32 s9, s25, s31
    s_cselect_b64 vcc, -1, 0
    s_mov_b32 s10, 8192
    s_mov_b32 s11, 0x00020000
    s_and_b32 s41, s3, 1
    s_lshl_b32 s41, s41, 12
    v_and_b32 v2, 31, v0             ; i
    v_lshrrev_b32 v4, 5, v1          ; hi
    v_and_b32 v7, 0x13, v2
    v_bfe_u32 v8, v2, 2, 1
    v_lshl_or_b32 v7, v8, 3, v7
    v_bfe_u32 v8, v2, 3, 1
    v_lshl_or_b32 v7, v8, 2, v7
    v_cndmask_b32 v7, v2, v7, vcc
    v_lshlrev_b32 v7, 7, v7
    v_lshl_add_u32 v7, v4, 4, v7
    v_lshlrev_b32 v8, 4, v4
    v_add_u32 v8, {63*128}, v8
    """)
    for kk in range(4):
        a(f"buffer_load_dwordx4 {vr(32+4*kk,4)}, v7, s[8:11], s41 offen offset:{kk*32}")
    for kk in range(4):
        a(f"buffer_load_dwordx4 {vr(48+4*kk,4)}, v8, s[8:11], 0 offen offset:{kk*32}")
    a(f"""
    v_bfe_u32 v9, v0, 2, 2
    v_lshl_add_u32 v9, v4, 3, v9
    v_lshlrev_b32 v9, 7, v9
    v_bfe_u32 v10, v0, 4, 1
    v_lshl_add_u32 v9, v10, 5, v9
    v_and_b32 v10, 1, v0
    v_lshl_add_u32 v9, v10, 4, v9
    v_bfe_u32 v10, v0, 1, 1
    v_lshl_add_u32 v9, v10, 3, v9
    s_waitcnt vmcnt(8)
    ds_write_b128 v6, v[24:27]
    ds_write_b128 v6, v[28:31] offset:4096
    s_waitcnt lgkmcnt(0)
    s_barrier
    """)
    B = 64
    for Tf in range(2):
        for kk in range(4):
            for b in range(2):
                off = (16*kk + 4*b)*128 + Tf*64
                a(f"ds_read_b64_tr_b16 {vr(B+(Tf*4+kk)*4+2*b,2)}, v9 offset:{off}")
    a("s_waitcnt vmcnt(0)")
    a("s_cbranch_vccnz K1_NOSUB")
    for i in range(16):
        a(f"""
        v_lshlrev_b32 v10, 16, v{32+i}
        v_and_b32 v11, 0xffff0000, v{32+i}
        v_lshlrev_b32 v12, 16, v{48+i}
        v_and_b32 v13, 0xffff0000, v{48+i}
        v_sub_f32 v10, v10, v12
        v_sub_f32 v11, v11, v13
        v_cvt_pk_bf16_f32 v{32+i}, v10, v11
        """)
    a.label("K1_NOSUB")
    a("s_waitcnt lgkmcnt(0)")
    a("s_nop 1")
    D = 96
    for Tf in range(2):
        for kk in range(4):
            cc = "0" if kk == 0 else vr(D+16*Tf, 16)
            a(f"v_mfma_f32_32x32x16_bf16 {vr(D+16*Tf,16)}, {vr(32+4*kk,4)}, {vr(B+(Tf*4+kk)*4,4)}, {cc}")
    a(f"s_lshr_b32 s42, s3, 1")
    a(f"s_lshl_b32 s42, s42, 13")
    a(f"s_add_u32 s42, s42, {hex(WF)}")
    srd(a, 12, 38, 39, "s42", 8192)
    a(f"s_lshr_b32 s41, s41, 1")
    a(f"v_lshlrev_b32 v6, 4, v1")
    a(f"s_add_u32 s43, s41, 0x1000")
    for Tf in range(2):
        for i in range(8):
            a(f"v_cvt_pk_bf16_f32 v{32+8*Tf+i}, v{D+16*Tf+2*i}, v{D+16*Tf+2*i+1}")
        for rho in range(2):
            a(f"buffer_store_dwordx4 {vr(32+8*Tf+4*rho,4)}, v6, s[12:15], {'s43' if Tf else 's41'} offen offset:{rho*1024}")
    a.label("K1_END")
    a("s_endpgm")
    return kd("prep_kernel", 128)
```

```python
from common import *
import os
DIAG = int(os.environ.get("DIAG", "0"))
DIAGOFF = 0x1800000
def stamp(a, reg):
    if DIAG:
        a(f"s_memtime s[{reg}:{reg+1}]")
        a("s_waitcnt lgkmcnt(0)")
def diag_store(a):
    if not DIAG: return
    a("s_mov_b64 exec, -1")
    stamp(a, 76)
    a("s_memrealtime s[78:79]")
    a("s_getreg_b32 s80, hwreg(HW_REG_HW_ID)")
    a("s_getreg_b32 s81, hwreg(HW_REG_XCC_ID)")
    a("s_waitcnt lgkmcnt(0)")
    srd(a, 84, 4, 5, DIAGOFF, 0x100000)
    a("s_lshl_b32 s82, s2, 3")
    a("s_add_u32 s82, s82, s3")
    a("s_lshl_b32 s82, s82, 5")
    for i, r in enumerate([80, 81, 70, 72, 74, 76, 68, 78]):
        a(f"v_mov_b32 v{200+i}, s{r}")
    a("v_mov_b32 v208, 0")
    a("buffer_store_dwordx4 v[200:203], v208, s[84:87], s82 offen")
    a("buffer_store_dwordx4 v[204:207], v208, s[84:87], s82 offen offset:16")
K2_GRID = 245
CNT = 32768
LB = 33280
LSTR = 264
K2_LDS = LB + 20480
RING = 8

KA = 2
VA = 6
O = 16
Q = 80
S = 112
P = 144
KF = 160
VF = 192
def rO(X, T): return vr(O + 32*X + 16*T, 16)
def rQ(X, kk): return vr(Q + 16*X + 4*kk, 4)
def rS(X): return vr(S + 16*X, 16)
def rP(X, u): return vr(P + 8*X + 4*u, 4)
def rK(b, kk): return vr(KF + 16*b + 4*kk, 4)
def rV(b, u, T): return vr(VF + 16*b + 8*u + 4*T, 4)

def qk(X, kb, kk):
    c = "0" if kk == 0 else rS(X)
    return f"v_mfma_f32_32x32x16_bf16 {rS(X)}, {rK(kb,kk)}, {rQ(X,kk)}, {c}"
def pv(X, vb, j):
    u, T = j >> 1, j & 1
    return f"v_mfma_f32_32x32x16_bf16 {rO(X,T)}, {rV(vb,u,T)}, {rP(X,u)}, {rO(X,T)}"
def rdK(slot, kb, kk):
    return f"ds_read_b128 {rK(kb,kk)}, v{KA+kk} offset:{slot*4096}"
def rdV(slot, vb, u, T, b):
    d = VF + 16*vb + 8*u + 4*T + 2*b
    return f"ds_read_b64_tr_b16 {vr(d,2)}, v{VA+2*T+b} offset:{slot*4096 + u*2048}"
def ex(X, e): return f"v_exp_f32 v{S+16*X+e}, v{S+16*X+e}"
def cv(X, j): return f"v_cvt_pk_bf16_f32 v{P+8*X+j}, v{S+16*X+2*j}, v{S+16*X+2*j+1}"
def gap_valu(g):
    X = 1 if g < 8 else 0
    j = g & 7
    ops = [ex(X, 2*j), ex(X, 2*j+1)]
    if j > 0: ops.append(cv(X, j-1))
    if j == 7: ops.append(cv(X, 7))
    return ops
def reads(p):
    r = [rdK((p+1) % RING, (p+1) & 1, kk) for kk in range(4)]
    r += [rdV(p % RING, p & 1, u, T, b) for u in range(2) for T in range(2) for b in range(2)]
    return r

def round_body(a, p, exit_label):
    kb = p & 1; vb = (p+1) & 1
    mf = [qk(0, kb, k) for k in range(4)] + [pv(0, vb, j) for j in range(4)] + \
         [qk(1, kb, k) for k in range(4)] + [pv(1, vb, j) for j in range(4)]
    nv = reads(p) + ["s_sub_u32 s12, s12, 1", "s_barrier", "s_waitcnt lgkmcnt(0)", f"s_cbranch_scc1 {exit_label}"]
    for g in range(16):
        a(mf[g]); a(nv[g])
        for op in gap_valu(g): a(op)

def gen_attention(a):
    a(f"""
    s_setprio 3
    v_and_b32 v1, 63, v0
    v_lshlrev_b32 v10, 4, v1
    s_lshl_b32 s13, s8, 3
    s_lshl_b32 s14, s3, 1
    s_add_u32 s13, s13, s14
    s_lshl_b32 s14, s13, 12
    s_add_u32 s15, s14, 0x1000
    s_waitcnt lgkmcnt(0)
    """)
    srd(a, 16, 4, 5, QF, NT32*4096)
    for X in range(2):
        for kk in range(4):
            a(f"buffer_load_dwordx4 {rQ(X,kk)}, v10, s[16:19], s{14+X} offen offset:{kk*1024}")
    a(f"""
    v_and_b32 v11, 31, v0            ; row i
    v_lshrrev_b32 v12, 5, v1         ; hi
    v_bfe_u32 v13, v11, 1, 1
    v_lshlrev_b32 v13, 2, v13
    v_bfe_u32 v14, v11, 2, 2
    v_or_b32 v13, v13, v14           ; f(i)
    v_xor_b32 v13, v13, v12          ; hi ^ f
    v_lshlrev_b32 v11, 7, v11
    """)
    for kk in range(4):
        a(f"v_xor_b32 v14, {2*kk}, v13")
        a(f"v_lshl_add_u32 v{KA+kk}, v14, 4, v11")
    a(f"""
    v_bfe_u32 v11, v0, 2, 2          ; rr
    v_lshl_add_u32 v13, v12, 2, v11  ; 4hi+rr
    v_lshlrev_b32 v13, 7, v13
    v_and_b32 v14, 1, v0
    v_lshl_add_u32 v13, v14, 3, v13  ; + (c4&1)*8
    v_bfe_u32 v14, v0, 4, 1
    v_lshlrev_b32 v14, 1, v14
    v_bfe_u32 v15, v0, 1, 1
    v_or_b32 v14, v14, v15           ; 2x + (c4>>1)
    v_lshrrev_b32 v11, 1, v11
    v_lshl_or_b32 v11, v11, 2, v12
    v_xor_b32 v14, v14, v11
    """)
    for T in range(2):
        for b in range(2):
            a(f"v_xor_b32 v15, {(4*T) ^ (2*b)}, v14")
            a(f"v_lshl_add_u32 v{VA+2*T+b}, v15, 4, v13")
            if b: a(f"v_add_u32 v{VA+2*T+b}, {8*128}, v{VA+2*T+b}")
    for i in range(64):
        a(f"v_mov_b32 v{O+i}, 0")
    a("s_sub_u32 s12, s11, 2")
    a("s_barrier")
    for kk in range(4): a(rdK(0, 0, kk))
    a("s_waitcnt vmcnt(0) lgkmcnt(0)")
    rd = reads(0)
    for k in range(4):
        a(qk(0, 0, k)); a(rd[k])
    for k in range(4):
        a(qk(1, 0, k)); a(rd[4+2*k]); a(rd[5+2*k])
    a("s_barrier")
    for g in range(8, 16):
        for op in gap_valu(g): a(op)
    a("s_waitcnt lgkmcnt(0)")
    stamp(a, 72)
    a("s_branch K2_R1")
    a.raw(".p2align 6")
    a.label("K2_R0")
    for p in range(RING):
        if p == 1: a.label("K2_R1")
        round_body(a, p, f"K2_E{p&1}")
    a("s_branch K2_R0")
    for par in range(2):
        a.label(f"K2_E{par}")
        for op in gap_valu(15): a(op)
        vb = par
        for g in range(8):
            if g % 2 == 0: a(pv(0, vb, g // 2))
            for op in gap_valu(g): a(op)
        for j in range(4): a(pv(1, vb, j))
        if par == 0: a("s_branch K2_EPI")
    a.label("K2_EPI")
    stamp(a, 74)
    a(f"""
    s_mul_i32 s20, s9, 392
    s_add_u32 s20, s20, s13
    s_lshl_b32 s20, s20, 12
    s_add_u32 s21, s20, 0x1000
    s_mul_i32 s22, s9, {QROWS*4}
    s_lshl_b32 s23, s13, 7
    s_add_u32 s22, s22, s23
    """)
    srd(a, 16, 4, 5, PO, 5*392*4096)
    srd(a, 24, 4, 5, PL, 5*QROWS*4)
    a("v_and_b32 v11, 31, v0")
    a("v_lshlrev_b32 v11, 2, v11")
    a("s_nop 7")
    for X in range(2):
        for T in range(2):
            for i in range(8):
                a(f"v_cvt_pk_bf16_f32 v{S+16*X+8*T+i}, v{O+32*X+16*T+2*i}, v{O+32*X+16*T+2*i+1}")
            for rho in range(2):
                a(f"buffer_store_dwordx4 {vr(S+16*X+8*T+4*rho,4)}, v10, s[16:19], s{20+X} offen offset:{(2*T+rho)*1024}")
    a("s_mov_b32 exec_lo, 0")
    for X in range(2):
        a(f"buffer_store_dword v{O+32*X+31}, v11, s[24:27], s22 offen offset:{X*128}")
    diag_store(a)
    a("s_endpgm")

VDMA = 2; VCNT = 3; VSEG = 4; VLP = 5; VLP1 = 6; VHL = 7; VDI = 8
VTWO = 10; VT = 11
IDX = 16
A16 = 24
A32 = 28
DS_ = 36
EN = 84
RK = 132
AD = 140

def dma(a):
    a(f"""
    s_and_b32 s41, s14, {hex(RING*4096-1)}
    s_add_u32 m0, s41, s15
    s_nop 0
    buffer_load_dwordx4 v{VDMA}, s[16:19], s14 offen lds
    s_add_u32 s14, s14, 0x1000
    """)
def slice_end(a, n, guard=None):
    a(f"s_waitcnt vmcnt({n})")
    if guard:
        a(f"s_cmp_ge_u32 s12, s11")
        a(f"s_cbranch_scc1 {guard}")
    a("s_barrier")
    if guard: a.label(guard)
    a("s_add_u32 s12, s12, 1")

def flush(a):
    for i in range(4):
        a(f"v_fma_mix_f32 v{A32+2*i}, v{A16+i}, 1.0, v{A32+2*i} op_sel_hi:[1,0,0]")
        a(f"v_fma_mix_f32 v{A32+2*i+1}, v{A16+i}, 1.0, v{A32+2*i+1} op_sel:[1,0,0] op_sel_hi:[1,0,0]")
    for i in range(4):
        a(f"v_mov_b32 v{A16+i}, 0")
def finalize(a, rho):
    for i in range(8):
        a(f"v_mul_f32 v{A32+i}, v{A32+i}, v{VDI+rho}")
    for i in range(4):
        a(f"v_cvt_pk_bf16_f32 v{VT+1+i}, v{A32+2*i}, v{A32+2*i+1}")
    a(f"buffer_store_dwordx4 {vr(VT+1,4)}, v{VHL}, s[28:31], {'s42' if rho else '0'} offen")
    for i in range(8):
        a(f"v_mov_b32 v{A32+i}, 0")

def gen_aux(a):
    a.label("K2_AUX")
    a(f"""
    s_sub_u32 s13, s3, 4
    s_lshl_b32 s15, s13, 10
    v_and_b32 v1, 63, v0
    v_lshlrev_b32 v{VDMA}, 4, v1
    v_add_u32 v{VDMA}, s15, v{VDMA}
    s_lshl_b32 s41, s10, 12
    s_add_u32 s41, s41, {hex(HI)}
    s_lshl_b32 s42, s11, 12
    s_mov_b32 s14, 0
    s_mov_b32 s12, 0
    s_mov_b32 s40, 0
    v_subrev_u32 v{VT}, 256, v0           ; ta
    s_mov_b32 s43, {CHUNK_B}
    v_mul_lo_u32 v{VSEG}, v{VT}, s43
    s_lshl_b32 s43, s2, 2
    s_waitcnt lgkmcnt(0)
    """)
    srd(a, 16, 4, 5, "s41", "s42")
    dma(a); dma(a)
    srd(a, 20, 4, 5, BINS, NCHUNK*CHUNK_B)
    a(f"buffer_load_dword v{VCNT}, v{VSEG}, s[20:23], s43 offen")
    for i in range(4): dma(a)
    srd(a, 24, 4, 5, T16, N, stride=128)
    a(f"s_lshl_b32 s41, s2, 13")
    a(f"s_add_u32 s41, s41, {hex(HL)}")
    srd(a, 28, 4, 5, "s41", 8192)
    srd(a, 32, 6, 7, 0, N*2)
    a(f"""
    v_mov_b32 v{VT+1}, -1
    v_mov_b32 v{VT+2}, -1
    v_mov_b32 v{VT+3}, -1
    v_mov_b32 v{VT+4}, -1
    v_lshlrev_b32 v{VT}, 4, v{VT}
    """)
    for i in range(5):
        a(f"ds_write_b128 v{VT}, {vr(VT+1,4)} offset:{LB+4096*i}")
    a(f"""
    v_mul_u32_u24 v{VT+1}, {LSTR}, v1
    v_add_u32 v{VT+1}, {LB}, v{VT+1}
    v_lshlrev_b32 v{VT+2}, 2, v1
    ds_write_b32 v{VT+2}, v{VT+1} offset:{CNT}
    v_mov_b32 v{VTWO}, 2
    v_lshrrev_b32 v{VT}, 3, v1            ; g
    s_lshl_b32 s41, s13, 3
    v_add_u32 v{VT}, s41, v{VT}
    v_mul_u32_u24 v{VLP}, {LSTR}, v{VT}
    v_add_u32 v{VLP}, {LB}, v{VLP}
    v_add_u32 v{VLP1}, {32*LSTR}, v{VLP}
    v_and_b32 v{VT+1}, 7, v1
    v_lshlrev_b32 v{VT+1}, 4, v{VT+1}     ; c*16
    v_lshl_add_u32 v{VHL}, v{VT}, 7, v{VT+1}
    s_lshl_b32 s41, s2, 6
    v_add_lshl_u32 v{VDI+1}, s41, v{VT}, 1
    """)
    for k in range(4):
        a(f"v_mov_b32 v{IDX+2*k+1}, v{VT+1}")
    for i in range(12): a(f"v_mov_b32 v{A16+i}, 0")
    for i in range(16, 48): a(f"v_mov_b32 v{DS_+i}, 0")
    a(f"""
    s_movk_i32 s42, 0x1000
    s_waitcnt vmcnt(5) lgkmcnt(0)
    s_barrier
    s_cmp_ge_u32 s2, {NBIN}
    s_cbranch_scc1 K2_IDLE
    """)
    dma(a)
    a(f"buffer_load_ushort v{VDI}, v{VDI+1}, s[32:35], 0 offen")
    a(f"buffer_load_ushort v{VDI+1}, v{VDI+1}, s[32:35], 0 offen offset:64")
    slice_end(a, 6)
    dma(a)
    a(f"""
    v_and_b32 v{VT}, 0xffff, v{VCNT}
    v_lshl_add_u32 v{VSEG}, v{VT}, 2, v{VSEG}
    v_lshrrev_b32 v{VCNT}, 16, v{VCNT}
    """)
    for k in range(12):
        a(f"buffer_load_dwordx4 {vr(EN+4*k,4)}, v{VSEG}, s[20:23], 0 offen offset:{1024+16*k}")
    a(f"""
    v_cmp_lt_u32 vcc, 48, v{VCNT}
    s_and_saveexec_b64 s[48:49], vcc
    v_mov_b32 v{VT}, 0
    v_mov_b32 v{VT+1}, 0x10000
    ds_add_u32 v{VT}, v{VT+1} offset:{CNT}
    s_mov_b64 exec, -1
    """)
    slice_end(a, 18)
    dma(a); slice_end(a, 18)
    dma(a); slice_end(a, 18)
    a("s_mov_b64 s[62:63], -1")
    for sl in range(6):
        dma(a)
        if sl == 0: a("s_waitcnt vmcnt(3)")
        a(f"s_cmp_eq_u64 s[62:63], 0")
        a(f"s_cbranch_scc1 K2_INS{sl}")
        a("s_mov_b64 exec, s[62:63]")
        for j in range(8):
            e = sl*8 + j
            a(f"v_cmpx_lt_u32 s[{48+2*j}:{49+2*j}], {e}, v{VCNT}")
            a(f"v_bfe_u32 v{AD+j}, v{EN+e}, 16, 8")
            a(f"ds_add_rtn_u32 v{RK+j}, v{AD+j}, v{VTWO} offset:{CNT}")
        a(f"s_waitcnt lgkmcnt(0)")
        for j in range(8):
            e = sl*8 + j
            a(f"s_mov_b64 exec, s[{48+2*j}:{49+2*j}]")
            a(f"v_min_u32 v{RK+j}, {LB+64*LSTR}, v{RK+j}")
            a(f"ds_write_b16 v{RK+j}, v{EN+e}")
        a("s_mov_b64 exec, -1")
        a.label(f"K2_INS{sl}")
        a("s_waitcnt lgkmcnt(0)")
        slice_end(a, 4)
    dma(a)
    a(f"""
    v_lshlrev_b32 v{VT}, 2, v1
    ds_read_b32 v{VT}, v{VT} offset:{CNT}
    v_mul_u32_u24 v{VT+1}, {LSTR}, v1
    v_lshlrev_b32 v{VDI}, 16, v{VDI}
    v_lshlrev_b32 v{VDI+1}, 16, v{VDI+1}
    """)
    for k in range(4):
        a(f"ds_read_u16 v{IDX+2*k}, v{VLP} offset:{2*k}")
    a(f"""
    s_waitcnt lgkmcnt(4)
    v_sub_u32 v{VT}, v{VT}, v{VT+1}
    v_subrev_u32 v{VT}, {LB}, v{VT}
    v_cmp_lt_u32 vcc, 256, v{VT}
    s_cmp_lg_u64 vcc, 0
    s_cselect_b32 s40, 1, 0
    """)
    for sh in (1, 2, 4):
        a(f"v_max_u32_dpp v{VT}, v{VT}, v{VT} row_shr:{sh} row_mask:0xf bank_mask:0xf bound_ctrl:0")
    a(f"""
    s_lshl_b32 s41, s13, 3
    s_add_u32 s41, s41, 7
    s_add_u32 s43, s41, 32
    v_readlane_b32 s36, v{VT}, s41
    v_readlane_b32 s37, v{VT}, s43
    s_add_u32 s36, s36, 7
    s_lshr_b32 s36, s36, 3
    s_max_u32 s36, s36, 1
    s_add_u32 s37, s37, 7
    s_lshr_b32 s37, s37, 3
    s_max_u32 s37, s37, 1
    s_add_u32 s37, s37, s36
    s_mov_b32 s38, 0
    s_mov_b32 s39, -2
    """)
    slice_end(a, 2)
    a("s_cmp_lg_u32 s40, 0")
    a("s_cbranch_scc1 K2_IDLE")
    stamp(a, 72)
    a.label("K2_G")
    for s in range(3):
        dma(a)
        a("s_waitcnt lgkmcnt(0)")
        for k in range(4):
            a(f"buffer_load_dwordx4 {vr(DS_+16*s+4*k,4)}, {vr(IDX+2*k,2)}, s[24:27], 0 idxen offen")
        a(f"""
        s_add_u32 s38, s38, 1
        v_add_u32 v{VLP}, 8, v{VLP}
        s_cmp_lg_u32 s38, s36
        s_cbranch_scc1 K2_GA{s}
        v_mov_b32 v{VLP}, v{VLP1}
        K2_GA{s}:
        """)
        for k in range(4):
            a(f"ds_read_u16 v{IDX+2*k}, v{VLP} offset:{2*k}")
        a("s_waitcnt vmcnt(10)")
        c = DS_ + 16*((s+1) % 3)
        for k in range(4):
            for i in range(4):
                a(f"v_pk_add_f16 v{A16+i}, v{A16+i}, v{c+4*k+i}")
        a(f"""
        s_add_u32 s39, s39, 1
        s_cmp_eq_u32 s39, s37
        s_cbranch_scc1 K2_GDONE
        s_cmp_eq_u32 s39, s36
        s_cselect_b32 s41, 0, s39
        s_and_b32 s41, s41, 7
        s_cbranch_scc1 K2_GB{s}
        """)
        flush(a)
        a(f"s_cmp_lg_u32 s39, s36")
        a(f"s_cbranch_scc1 K2_GB{s}")
        finalize(a, 0)
        a.label(f"K2_GB{s}")
        slice_end(a, 10, guard=f"K2_GC{s}")
    a("s_branch K2_G")
    a.label("K2_GDONE")
    stamp(a, 74)
    flush(a)
    finalize(a, 1)
    slice_end(a, 4, guard="K2_GC3")
    a.label("K2_IDLE")
    a("s_cmp_ge_u32 s12, s11")
    a("s_cbranch_scc1 K2_AEND")
    dma(a)
    slice_end(a, 4)
    a("s_branch K2_IDLE")
    a.label("K2_AEND")
    diag_store(a)
    a("s_cmp_eq_u32 s40, 0")
    a("s_cbranch_scc1 K2_END")
    gen_slow(a)

def gen_slow(a):
    ACC = LB
    a(f"""
    s_waitcnt vmcnt(0) lgkmcnt(0)
    s_barrier
    v_subrev_u32 v{VT}, 256, v0
    v_lshlrev_b32 v{VT}, 4, v{VT}
    v_mov_b32 v{VT+1}, 0
    v_mov_b32 v{VT+2}, 0
    v_mov_b32 v{VT+3}, 0
    v_mov_b32 v{VT+4}, 0
    """)
    for i in range(4):
        a(f"ds_write_b128 v{VT}, {vr(VT+1,4)} offset:{ACC+4096*i}")
    a(f"""
    s_waitcnt lgkmcnt(0)
    s_barrier
    s_mov_b32 s44, s13
    v_lshrrev_b32 v{RK}, 3, v1         ; g
    v_and_b32 v{RK+1}, 7, v1
    v_lshlrev_b32 v{RK+1}, 5, v{RK+1}
    K2_S0:
    s_mul_i32 s45, s44, {CHUNK_B}
    s_lshl_b32 s46, s2, 2
    s_add_u32 s46, s46, s45
    v_mov_b32 v{VT}, 0
    buffer_load_dword v{VT+1}, v{VT}, s[20:23], s46 offen
    s_waitcnt vmcnt(0)
    v_readfirstlane_b32 s46, v{VT+1}
    s_lshr_b32 s47, s46, 16            ; count
    s_and_b32 s46, s46, 0xffff
    s_lshl_b32 s46, s46, 2
    s_add_u32 s45, s45, s46
    v_mov_b32 v{RK+2}, v{RK}
    K2_S1:
    v_cmp_gt_u32 vcc, s47, v{RK+2}
    s_and_saveexec_b64 s[48:49], vcc
    s_cbranch_execz K2_S2
    v_lshlrev_b32 v{VT}, 2, v{RK+2}
    buffer_load_dword v{VT+1}, v{VT}, s[20:23], s45 offen offset:1024
    s_waitcnt vmcnt(0)
    v_and_b32 v{IDX}, 0xffff, v{VT+1}
    buffer_load_dwordx4 {vr(DS_,4)}, {vr(IDX,2)}, s[24:27], 0 idxen offen
    v_bfe_u32 v{VT}, v{VT+1}, 18, 6
    v_lshl_add_u32 v{VT}, v{VT}, 8, v{RK+1}
    s_waitcnt vmcnt(0)
    """)
    for i in range(4):
        a(f"v_cvt_f32_f16 v{A32+2*i}, v{DS_+i}")
        a(f"v_cvt_f32_f16_sdwa v{A32+2*i+1}, v{DS_+i} dst_sel:DWORD dst_unused:UNUSED_PAD src0_sel:WORD_1")
    for i in range(8):
        a(f"ds_add_f32 v{VT}, v{A32+i} offset:{ACC+4*i}")
    a(f"""
    s_mov_b64 exec, -1
    v_add_u32 v{RK+2}, 8, v{RK+2}
    s_branch K2_S1
    K2_S2:
    s_mov_b64 exec, -1
    s_add_u32 s44, s44, 4
    s_cmp_lt_u32 s44, {NCHUNK}
    s_cbranch_scc1 K2_S0
    s_waitcnt lgkmcnt(0)
    s_barrier
    v_lshlrev_b32 v{VT}, 1, v{VHL}      ; local*256 + c*32
    """)
    for rho in range(2):
        a(f"ds_read_b128 {vr(A32,4)}, v{VT} offset:{ACC+8192*rho}")
        a(f"ds_read_b128 {vr(A32+4,4)}, v{VT} offset:{ACC+8192*rho+16}")
        a("s_waitcnt lgkmcnt(0)")
        finalize(a, rho)

def gen_k2(a):
    header(a, "attn_kernel")
    a(f"""
    s_cmp_ge_u32 s2, {K2_GRID}
    s_cbranch_scc1 K2_END
    s_load_dwordx2 s[4:5], s[0:1], 88
    s_load_dwordx2 s[6:7], s[0:1], 24
    """)
    if DIAG:
        a("s_memrealtime s[68:69]")
        stamp(a, 70)
        a("s_mov_b32 s72, 0")
        a("s_mov_b32 s74, 0")
    a(f"""
    v_lshrrev_b32 v1, 6, v0
    s_mul_hi_u32 s8, s2, 0x33333334     ; q block
    v_readfirstlane_b32 s3, v1
    s_mul_i32 s9, s8, 5
    s_sub_u32 s9, s2, s9                ; split
    s_mul_i32 s10, s9, 78
    s_cmp_lg_u32 s9, 0
    s_addc_u32 s10, s10, 0
    s_mov_b32 s11, 78
    s_cmp_eq_u32 s9, 0
    s_addc_u32 s11, s11, 0
    s_cmp_ge_u32 s3, 4
    s_cbranch_scc1 K2_AUX
    """)
    gen_attention(a)
    gen_aux(a)
    a.label("K2_END")
    a("s_endpgm")
    return kd("attn_kernel", 224)
```

```python
from common import *
K3_GRID = 433
K3_BLOCK = 128
K3_LDS = 8192
PB = 16
WG = 96
WL = 112
HB = 128
XB = 144
LB_ = 152
YG = 160
YL = 176

def gen_k3(a):
    header(a, "fin_kernel")
    a(f"""
    s_load_dwordx2 s[4:5], s[0:1], 88
    s_load_dwordx2 s[6:7], s[0:1], 0
    s_load_dwordx2 s[8:9], s[0:1], 72
    s_and_b32 s10, s2, 7
    s_lshl_b32 s10, s10, 3
    s_bfe_u32 s11, s2, 0x30003
    s_or_b32 s10, s10, s11
    s_andn2_b32 s11, s2, 63
    s_or_b32 s10, s10, s11
    s_cmp_ge_u32 s10, {NT32}
    s_cbranch_scc1 K3_END
    v_lshrrev_b32 v1, 6, v0
    v_and_b32 v2, 63, v0
    v_readfirstlane_b32 s3, v1          ; Tf
    v_lshlrev_b32 v3, 4, v2             ; lane*16
    v_and_b32 v4, 31, v0
    v_lshlrev_b32 v5, 2, v4             ; q*4
    v_lshrrev_b32 v6, 5, v2             ; hi
    v_lshlrev_b32 v7, 7, v4
    v_lshl_add_u32 v7, v6, 4, v7        ; q*128 + hi*16
    s_lshl_b32 s11, s10, 12
    s_lshl_b32 s12, s10, 7
    s_waitcnt lgkmcnt(0)
    """)
    srd(a, 16, 4, 5, PL, 5*QROWS*4)
    srd(a, 20, 4, 5, PO, 5*392*4096)
    for s in range(5):
        a(f"buffer_load_dword v{LB_+s}, v5, s[16:19], s12 offen")
        if s < 4: a(f"s_add_u32 s12, s12, {QROWS*4}")
    a("s_mov_b32 s13, s11")
    srd(a, 24, 4, 5, WF, 16384)
    a("s_lshl_b32 s14, s3, 12")
    a("s_add_u32 s15, s14, 0x2000")
    for kk in range(4):
        a(f"buffer_load_dwordx4 {vr(WG+4*kk,4)}, v3, s[24:27], s14 offen offset:{kk*1024}")
    for s in range(5):
        for kk in range(4):
            a(f"buffer_load_dwordx4 {vr(PB+16*s+4*kk,4)}, v3, s[20:23], s13 offen offset:{kk*1024}")
        if s < 4: a(f"s_add_u32 s13, s13, {392*4096}")
    for kk in range(4):
        a(f"buffer_load_dwordx4 {vr(WL+4*kk,4)}, v3, s[24:27], s15 offen offset:{kk*1024}")
    srd(a, 28, 4, 5, HL, QROWS*128)
    for kk in range(4):
        a(f"buffer_load_dwordx4 {vr(HB+4*kk,4)}, v7, s[28:31], s11 offen offset:{kk*32}")
    srd(a, 32, 6, 7, 0, N*128)
    srd(a, 36, 8, 9, 0, N*128)
    a("s_lshl_b32 s14, s3, 6")
    a("v_add_u32 v8, s11, v7")
    a("v_add_u32 v8, s14, v8")
    for r in range(2):
        a(f"buffer_load_dwordx4 {vr(XB+4*r,4)}, v8, s[32:35], 0 offen offset:{r*32}")
    a(f"""
    s_waitcnt vmcnt(34)
    v_add_f32 v{LB_}, v{LB_}, v{LB_+1}
    v_add_f32 v{LB_+2}, v{LB_+2}, v{LB_+3}
    v_add_f32 v{LB_}, v{LB_}, v{LB_+4}
    v_add_f32 v{LB_}, v{LB_}, v{LB_+2}
    s_mov_b32 s40, {hex(f32bits(2.0**-80))}
    s_mov_b32 s41, {hex(f32bits(2.0**120))}
    v_cmp_le_f32 vcc, s40, v{LB_}
    v_cmp_ge_f32 s[42:43], s41, v{LB_}
    s_and_b64 vcc, vcc, s[42:43]
    s_cmp_eq_u64 vcc, -1
    s_cbranch_scc0 K3_EXACT
    K3_GO:
    v_rcp_f32 v{LB_}, v{LB_}
    """)
    for s in range(5):
        a(f"s_waitcnt vmcnt({26 - 4*s})")
        for kk in range(4):
            c = "0" if (s == 0 and kk == 0) else vr(YG, 16)
            a(f"v_mfma_f32_32x32x16_bf16 {vr(YG,16)}, {vr(WG+4*kk,4)}, {vr(PB+16*s+4*kk,4)}, {c}")
    a("s_waitcnt vmcnt(2)")
    for kk in range(4):
        c = "0" if kk == 0 else vr(YL, 16)
        a(f"v_mfma_f32_32x32x16_bf16 {vr(YL,16)}, {vr(WL+4*kk,4)}, {vr(HB+4*kk,4)}, {c}")
    a("s_waitcnt vmcnt(0)")
    for i in range(8):
        a(f"v_lshlrev_b32 v{PB+2*i}, 16, v{XB+i}")
        a(f"v_and_b32 v{PB+2*i+1}, 0xffff0000, v{XB+i}")
    for i in range(16):
        a(f"v_fmac_f32 v{PB+i}, v{YG+i}, v{LB_}")
    for i in range(16):
        a(f"v_add_f32 v{PB+i}, v{PB+i}, v{YL+i}")
    for i in range(8):
        a(f"v_cvt_pk_bf16_f32 v{XB+i}, v{PB+2*i}, v{PB+2*i+1}")
    for r in range(2):
        a(f"buffer_store_dwordx4 {vr(XB+4*r,4)}, v8, s[36:39], 0 offen offset:{r*32}")
    a.label("K3_END")
    a("s_endpgm")

    Qr, Kr, Vr, Sr, Pr, Or = 16, 32, 48, 64, 80, 192
    KA, VA, M, T0 = 9, 224, 13, 228
    a.label("K3_EXACT")
    a("s_waitcnt vmcnt(0)")
    srd(a, 44, 4, 5, QF, NT32*4096)
    srd(a, 48, 4, 5, HI, NT32*4096)
    for kk in range(4):
        a(f"buffer_load_dwordx4 {vr(Qr+4*kk,4)}, v3, s[44:47], s11 offen offset:{kk*1024}")
    a(f"""
    s_lshl_b32 s52, s3, 12
    v_bfe_u32 v14, v4, 1, 1
    v_lshlrev_b32 v14, 2, v14
    v_bfe_u32 v15, v4, 2, 2
    v_or_b32 v14, v14, v15
    v_xor_b32 v14, v14, v6
    v_lshlrev_b32 v15, 7, v4
    v_add_u32 v15, s52, v15
    """)
    for kk in range(4):
        a(f"v_xor_b32 v{T0}, {2*kk}, v14")
        a(f"v_lshl_add_u32 v{KA+kk}, v{T0}, 4, v15")
    a(f"""
    v_bfe_u32 v14, v0, 2, 2
    v_lshl_add_u32 v15, v6, 2, v14
    v_lshlrev_b32 v15, 7, v15
    v_and_b32 v{T0}, 1, v0
    v_lshl_add_u32 v15, v{T0}, 3, v15
    v_add_u32 v15, s52, v15
    v_bfe_u32 v{T0}, v0, 4, 1
    v_lshlrev_b32 v{T0}, 1, v{T0}
    v_bfe_u32 v{T0+1}, v0, 1, 1
    v_or_b32 v{T0}, v{T0}, v{T0+1}
    v_lshrrev_b32 v14, 1, v14
    v_lshl_or_b32 v14, v14, 2, v6
    v_xor_b32 v14, v14, v{T0}
    """)
    for T in range(2):
        for b in range(2):
            a(f"v_xor_b32 v{T0}, {(4*T) ^ (2*b)}, v14")
            a(f"v_lshl_add_u32 v{VA+2*T+b}, v{T0}, 4, v15")
            if b: a(f"v_add_u32 v{VA+2*T+b}, {8*128}, v{VA+2*T+b}")
    a(f"""
    v_add_u32 v{T0+2}, s52, v3
    v_mov_b32 v{M}, 0xff800000
    v_mov_b32 v{T0+3}, 0xff800000
    v_cmp_eq_u32 s[54:55], 1, v6
    s_waitcnt vmcnt(0)
    v_and_b32 v{T0}, 0xffff, v{Qr+15}
    v_cndmask_b32 v{Qr+15}, v{Qr+15}, v{T0}, s[54:55]
    """)
    for i in range(32): a(f"v_mov_b32 v{Or+i}, 0")
    a("s_mov_b32 s56, 0")
    a.label("K3_PASS")
    a("s_mov_b32 s53, 0")
    a.label("K3_TILE")
    for i in range(4):
        a(f"buffer_load_dwordx4 {vr(Kr+4*i,4)}, v3, s[48:51], s53 offen offset:{i*1024}")
    a("s_waitcnt vmcnt(0)")
    for i in range(4):
        a(f"ds_write_b128 v{T0+2}, {vr(Kr+4*i,4)} offset:{i*1024}")
    a("s_waitcnt lgkmcnt(0)")
    for kk in range(4):
        a(f"ds_read_b128 {vr(Kr+4*kk,4)}, v{KA+kk}")
    for u in range(2):
        for T in range(2):
            for b in range(2):
                a(f"ds_read_b64_tr_b16 {vr(Vr+8*u+4*T+2*b,2)}, v{VA+2*T+b} offset:{u*2048}")
    a("s_waitcnt lgkmcnt(0)")
    for kk in range(4):
        c = "0" if kk == 0 else vr(Sr, 16)
        a(f"v_mfma_f32_32x32x16_bf16 {vr(Sr,16)}, {vr(Kr+4*kk,4)}, {vr(Qr+4*kk,4)}, {c}")
    a("s_nop 15")
    a(f"s_cmp_lg_u32 s53, {(NT32-1)*4096}")
    a("s_cbranch_scc1 K3_NOMASK")
    for r in range(8, 12):
        a(f"v_cndmask_b32 v{Sr+r}, v{Sr+r}, v{T0+3}, s[54:55]")
    for r in range(12, 16):
        a(f"v_mov_b32 v{Sr+r}, v{T0+3}")
    a.label("K3_NOMASK")
    a("s_cmp_lg_u32 s56, 0")
    a("s_cbranch_scc1 K3_P2")
    for r in range(0, 16, 2):
        a(f"v_max3_f32 v{M}, v{M}, v{Sr+r}, v{Sr+r+1}")
    a("s_branch K3_NEXT")
    a.label("K3_P2")
    for r in range(16):
        a(f"v_sub_f32 v{Sr+r}, v{Sr+r}, v{M}")
    for r in range(16):
        a(f"v_exp_f32 v{Sr+r}, v{Sr+r}")
    for j in range(8):
        a(f"v_cvt_pk_bf16_f32 v{Pr+j}, v{Sr+2*j}, v{Sr+2*j+1}")
    for u in range(2):
        for T in range(2):
            a(f"v_mfma_f32_32x32x16_bf16 {vr(Or+16*T,16)}, {vr(Vr+8*u+4*T,4)}, {vr(Pr+4*u,4)}, {vr(Or+16*T,16)}")
    a.label("K3_NEXT")
    a(f"""
    s_add_u32 s53, s53, 0x1000
    s_cmp_lt_u32 s53, {NT32*4096}
    s_cbranch_scc1 K3_TILE
    s_cmp_lg_u32 s56, 0
    s_cbranch_scc1 K3_XDONE
    v_mov_b32 v{T0}, v{M}
    s_nop 1
    v_permlane32_swap_b32 v{M}, v{T0}
    v_max_f32 v{M}, v{M}, v{T0}
    s_mov_b32 s56, 1
    s_branch K3_PASS
    K3_XDONE:
    s_nop 15
    """)
    for i in range(16):
        a(f"v_cvt_pk_bf16_f32 v{PB+i}, v{Or+2*i}, v{Or+2*i+1}")
    for i in range(16, 80):
        a(f"v_mov_b32 v{PB+i}, 0")
    a(f"""
    v_mov_b32 v{LB_}, v{Or+31}
    v_mov_b32 v{T0}, v{Or+31}
    s_nop 1
    v_permlane32_swap_b32 v{T0}, v{LB_}
    s_nop 1
    s_branch K3_GO
    """)
    return kd("fin_kernel", 232)
```

```python
from common import *
NLN = 196
K1_GRID = NCHUNK + NLN + 1
K1_LDS = 20480

def gen_k1(a):
    header(a, "prep_kernel")
    a(f"""
    s_cmp_ge_u32 s2, {K1_GRID}
    s_cbranch_scc1 K1_END
    s_load_dwordx16 s[16:31], s[0:1], 0
    s_load_dwordx8 s[32:39], s[0:1], 64
    s_cmp_ge_u32 s2, {NCHUNK}
    s_cbranch_scc1 K1_NOTBIN
    """)
    a(f"""
    v_lshlrev_b32 v1, 4, v0
    v_add_u32 v2, 6400, v1
    v_lshlrev_b32 v3, 2, v0
    v_mov_b32 v4, 0
    v_mov_b32 v5, 1
    s_mul_i32 s3, s2, {CHUNK_E*4}
    ds_write_b32 v3, v4
    s_waitcnt lgkmcnt(0)
    """)
    srd(a, 4, 20, 21, 0, 3200000)
    srd(a, 8, 18, 19, 0, 3200000)
    a(f"s_mul_i32 s40, s2, {CHUNK_B}")
    a(f"s_add_u32 s40, s40, {hex(BINS)}")
    srd(a, 12, 38, 39, "s40", CHUNK_B)
    a(f"""
    v_cmp_gt_u32 vcc, 200, v0
    s_and_saveexec_b64 s[42:43], vcc
    buffer_load_dwordx4 v[8:11], v1, s[4:7], s3 offen
    buffer_load_dwordx4 v[12:15], v1, s[4:7], s3 offen offset:3200
    buffer_load_dwordx4 v[16:19], v2, s[4:7], s3 offen
    buffer_load_dwordx4 v[20:23], v2, s[4:7], s3 offen offset:3200
    buffer_load_dwordx4 v[24:27], v1, s[8:11], s3 offen
    buffer_load_dwordx4 v[28:31], v1, s[8:11], s3 offen offset:3200
    buffer_load_dwordx4 v[32:35], v2, s[8:11], s3 offen
    buffer_load_dwordx4 v[36:39], v2, s[8:11], s3 offen offset:3200
    s_barrier
    """)
    for q in range(4):
        a(f"s_waitcnt vmcnt({7-q})")
        for j in range(4):
            e = q*4 + j
            a(f"v_lshrrev_b32 v{40+e}, 4, v{8+e}")
            a(f"v_and_b32 v{40+e}, 0x3fc, v{40+e}")
            a(f"ds_add_rtn_u32 v{56+e}, v{40+e}, v5")
    a(f"""
    s_mov_b64 exec, s[42:43]
    s_waitcnt lgkmcnt(0)
    s_barrier
    ds_read_b32 v6, v3
    s_waitcnt lgkmcnt(0)
    v_add_u32 v7, 3, v6
    v_and_b32 v7, 0xfffffffc, v7
    v_mov_b32 v72, v7
    """)
    for sh in (1, 2, 4, 8):
        a(f"v_add_u32_dpp v72, v72, v72 row_shr:{sh} row_mask:0xf bank_mask:0xf bound_ctrl:0")
    a("v_add_u32_dpp v72, v72, v72 row_bcast:15 row_mask:0xa bank_mask:0xf")
    a("v_add_u32_dpp v72, v72, v72 row_bcast:31 row_mask:0xc bank_mask:0xf")
    a(f"""
    v_lshrrev_b32 v73, 6, v0
    v_lshlrev_b32 v73, 2, v73
    v_and_b32 v74, 63, v0
    v_cmp_eq_u32 vcc, 63, v74
    s_and_saveexec_b64 s[44:45], vcc
    ds_write_b32 v73, v72 offset:2048
    s_mov_b64 exec, s[44:45]
    s_waitcnt lgkmcnt(0)
    s_barrier
    ds_read_b128 v[76:79], v4 offset:2048
    v_sub_u32 v72, v72, v7
    s_waitcnt lgkmcnt(0)
    v_cmp_lt_u32 vcc, 63, v0
    v_cndmask_b32 v76, 0, v76, vcc
    v_cmp_lt_u32 vcc, 127, v0
    v_cndmask_b32 v77, 0, v77, vcc
    v_cmp_lt_u32 vcc, 191, v0
    v_cndmask_b32 v78, 0, v78, vcc
    v_add3_u32 v72, v72, v76, v77
    v_add_u32 v72, v72, v78
    ds_write_b32 v3, v72 offset:1024
    v_lshl_or_b32 v75, v6, 16, v72
    buffer_store_dword v75, v3, s[12:15], 0 offen
    s_waitcnt lgkmcnt(0)
    s_barrier
    v_cmp_gt_u32 vcc, 200, v0
    s_and_saveexec_b64 s[42:43], vcc
    """)
    for e in range(16):
        a(f"ds_read_b32 v{40+e}, v{40+e} offset:1024")
    a("s_waitcnt vmcnt(1)")
    for e in range(16):
        a(f"v_lshl_or_b32 v{24+e}, v{8+e}, 18, v{24+e}")
    for e in range(16):
        a(f"s_waitcnt lgkmcnt({15-e})")
        a(f"v_add_lshl_u32 v{40+e}, v{40+e}, v{56+e}, 2")
    for e in range(16):
        a(f"ds_write_b32 v{40+e}, v{24+e} offset:4096")
    a(f"""
    s_mov_b64 exec, s[42:43]
    s_waitcnt lgkmcnt(0)
    s_barrier
    """)
    for i in range(4):
        a(f"ds_read_b128 v[{8+4*i}:{11+4*i}], v1 offset:{4096+4096*i}")
    a("v_add_u32 v2, 0x2000, v1")
    for i in range(4):
        a(f"s_waitcnt lgkmcnt({3-i})")
        base = "v1" if i < 2 else "v2"
        if i % 2 == 0:
            a(f"buffer_store_dwordx4 v[{8+4*i}:{11+4*i}], {base}, s[12:15], 0 offen offset:1024")
        else:
            a(f"s_movk_i32 s3, 0x1000")
            a(f"buffer_store_dwordx4 v[{8+4*i}:{11+4*i}], {base}, s[12:15], s3 offen offset:1024")
    a("s_endpgm")

    a.label("K1_NOTBIN")
    a(f"""
    s_cmp_eq_u32 s2, {NCHUNK+NLN}
    s_cbranch_scc1 K1_WPREP
    v_and_b32 v1, 15, v0            ; n
    v_bfe_u32 v2, v0, 4, 2          ; g
    v_lshrrev_b32 v3, 6, v0         ; wave
    s_sub_u32 s3, s2, {NCHUNK}
    s_lshl_b32 s3, s3, 6
    v_lshlrev_b32 v4, 4, v3
    v_add3_u32 v4, v4, v1, s3       ; R = row
    v_lshlrev_b32 v5, 7, v4
    v_lshl_add_u32 v5, v2, 4, v5    ; R*128 + g*16
    v_lshlrev_b32 v6, 4, v0
    s_waitcnt lgkmcnt(0)
    """)
    srd(a, 4, 16, 17, 0, N*128)
    srd(a, 8, 26, 27, 0, 8192)
    srd(a, 12, 28, 29, 0, 8192)
    a(f"""
    buffer_load_dwordx4 v[16:19], v5, s[4:7], 0 offen
    buffer_load_dwordx4 v[20:23], v5, s[4:7], 0 offen offset:64
    s_movk_i32 s40, 0x1000
    buffer_load_dwordx4 v[24:27], v6, s[8:11], 0 offen
    buffer_load_dwordx4 v[28:31], v6, s[8:11], s40 offen
    """)
    a(f"""
    v_lshrrev_b32 v7, 2, v1
    v_lshlrev_b32 v7, 3, v7
    v_and_b32 v8, 3, v1
    v_add_u32 v7, v7, v8
    v_lshlrev_b32 v7, 7, v7
    v_lshl_add_u32 v7, v2, 4, v7
    """)
    WK = 64
    for t2 in range(4):
        for kk in range(2):
            off = (4*(t2 & 1))*128 + kk*64
            so = "s40" if (t2 >> 1) else "0"
            b = WK + (t2*2+kk)*4
            a(f"buffer_load_dwordx4 {vr(b,4)}, v7, s[12:15], {so} offen offset:{off}")
    srd(a, 44, 38, 39, HI, NT32*4096)
    srd(a, 48, 38, 39, QF, NT32*4096)
    srd(a, 52, 38, 39, T16, NT32*4096)
    a(f"""
    v_bfe_u32 v8, v4, 1, 1
    v_lshlrev_b32 v8, 2, v8
    v_bfe_u32 v9, v4, 2, 2
    v_or_b32 v8, v8, v9              ; f(R)
    v_xor_b32 v9, v2, v8             ; chunk g ^ f
    v_xor_b32 v10, 4, v9             ; chunk (4+g) ^ f
    v_lshlrev_b32 v11, 7, v4
    v_lshl_add_u32 v9, v9, 4, v11
    v_lshl_add_u32 v10, v10, 4, v11
    v_lshrrev_b32 v11, 5, v4
    v_lshlrev_b32 v11, 12, v11       ; qtile*4096
    v_and_b32 v12, 31, v4
    v_lshl_add_u32 v11, v12, 4, v11  ; + (R&31)*16
    v_lshrrev_b32 v12, 1, v2
    v_lshl_add_u32 v11, v12, 10, v11 ; + (g>>1)*1024
    v_and_b32 v12, 1, v2
    v_lshl_add_u32 v11, v12, 9, v11
    v_bfe_u32 v12, v0, 2, 2          ; rr
    v_lshl_add_u32 v12, v2, 3, v12   ; 8g+rr
    v_lshlrev_b32 v12, 7, v12
    v_and_b32 v13, 3, v0
    v_lshl_add_u32 v12, v13, 4, v12
    v_mov_b32 v14, 0x3f800000
    v_cmp_gt_u32 vcc, {N}, v4
    v_cndmask_b32 v14, 0, v14, vcc
    s_waitcnt vmcnt(8)
    ds_write_b128 v6, v[24:27]
    ds_write_b128 v6, v[28:31] offset:4096
    """)
    X = 32
    for i in range(8):
        a(f"v_lshlrev_b32 v{X+2*i}, 16, v{16+i}")
        a(f"v_and_b32 v{X+2*i+1}, 0xffff0000, v{16+i}")
    a(f"s_waitcnt lgkmcnt(0)")
    a(f"s_barrier")
    WQ = 96
    for t in range(4):
        for kk in range(2):
            for b in range(2):
                off = (32*kk + 4*b)*128 + (t >> 1)*64 + (t & 1)*8
                d = WQ + (t*2+kk)*4 + 2*b
                a(f"ds_read_b64_tr_b16 {vr(d,2)}, v12 offset:{off}")
    a(f"v_add_f32 v48, v{X}, v{X+1}")
    a(f"v_add_f32 v49, v{X+2}, v{X+3}")
    for i in range(4, 16, 2):
        a(f"v_add_f32 v48, v48, v{X+i}")
        a(f"v_add_f32 v49, v49, v{X+i+1}")
    a("v_add_f32 v48, v48, v49")
    allreduce_rows(a, 48, 49)
    allreduce_halves(a, 48, 49)
    a(f"v_mul_f32 v48, {hex(f32bits(1/64))}, v48")
    for i in range(16):
        a(f"v_sub_f32 v{X+i}, v{X+i}, v48")
    a(f"v_mul_f32 v48, v{X}, v{X}")
    a(f"v_mul_f32 v49, v{X+1}, v{X+1}")
    for i in range(2, 16, 2):
        a(f"v_fmac_f32 v48, v{X+i}, v{X+i}")
        a(f"v_fmac_f32 v49, v{X+i+1}, v{X+i+1}")
    a("v_add_f32 v48, v48, v49")
    allreduce_rows(a, 48, 49)
    allreduce_halves(a, 48, 49)
    a(f"s_mov_b32 s41, {hex(f32bits(1/64))}")
    a(f"v_mov_b32 v49, {hex(f32bits(1e-5))}")
    a(f"v_fma_f32 v48, v48, s41, v49")
    a(f"v_rsq_f32 v48, v48")
    a(f"s_mov_b32 s41, {hex(f32bits(TSC/65535.0))}")
    a(f"v_mov_b32 v49, {hex(f32bits(TBIAS/65535.0))}")
    for i in range(16):
        a(f"v_mul_f32 v{X+i}, v{X+i}, v48")
    HB = 16
    for i in range(8):
        a(f"v_cvt_pk_bf16_f32 v{HB+i}, v{X+2*i}, v{X+2*i+1}")
    for i in range(16):
        a(f"v_fma_f32 v{X+i}, v{X+i}, s41, v49")
    for i in range(8):
        a(f"v_cvt_pknorm_u16_f32 v{24+i}, v{X+2*i}, v{X+2*i+1}")
    a("s_waitcnt lgkmcnt(0)")
    for t in range(4):
        a(f"v_mfma_f32_16x16x32_bf16 {vr(32+4*t,4)}, {vr(WQ+(t*2)*4,4)}, {vr(HB,4)}, 0")
    for t in range(4):
        a(f"v_mfma_f32_16x16x32_bf16 {vr(32+4*t,4)}, {vr(WQ+(t*2+1)*4,4)}, {vr(HB+4,4)}, {vr(32+4*t,4)}")
    a(f"""
    buffer_store_dwordx4 v[24:27], v5, s[52:55], 0 offen
    buffer_store_dwordx4 v[28:31], v5, s[52:55], 0 offen offset:64
    buffer_store_dwordx4 v[16:19], v9, s[44:47], 0 offen
    v_and_b32 v50, 0xffff, v23
    v_or_b32 v50, v50, v14
    v_cmp_eq_u32 vcc, 3, v2
    v_cndmask_b32 v23, v23, v50, vcc
    buffer_store_dwordx4 v[20:23], v10, s[44:47], 0 offen
    """)
    for i in range(8):
        a(f"v_cvt_pk_bf16_f32 v{52+i}, v{32+2*i}, v{33+2*i}")
    a("s_waitcnt vmcnt(4)")
    Q2 = 96
    for t in range(4):
        a(f"v_mfma_f32_16x16x32_bf16 {vr(Q2+4*t,4)}, {vr(WK+(t*2)*4,4)}, v[52:55], 0")
    for t in range(4):
        a(f"v_mfma_f32_16x16x32_bf16 {vr(Q2+4*t,4)}, {vr(WK+(t*2+1)*4,4)}, v[56:59], {vr(Q2+4*t,4)}")
    a(f"v_mul_f32 v48, v{Q2}, v{Q2}")
    a(f"v_mul_f32 v49, v{Q2+1}, v{Q2+1}")
    for i in range(2, 16, 2):
        a(f"v_fmac_f32 v48, v{Q2+i}, v{Q2+i}")
        a(f"v_fmac_f32 v49, v{Q2+i+1}, v{Q2+i+1}")
    a("v_add_f32 v48, v48, v49")
    a(f"v_cndmask_b32 v50, 0, v{Q2+15}, vcc")
    allreduce_rows(a, 48, 49)
    allreduce_rows(a, 50, 51)
    allreduce_halves(a, 48, 49)
    allreduce_halves(a, 50, 51)
    c = LOG2E / 8
    a(f"""
    v_sqrt_f32 v48, v48
    s_mov_b32 s41, {hex(f32bits(c))}
    s_mov_b32 s42, {hex(f32bits(-c*8.1))}
    v_mov_b32 v49, {hex(f32bits(64.0))}
    v_mul_f32 v50, s41, v50
    v_fma_f32 v48, v48, s42, v49      ; -shift
    """)
    for i in range(16):
        a(f"v_fma_f32 v{Q2+i}, v{Q2+i}, s41, -v50")
    a(f"v_cndmask_b32 v{Q2+15}, v{Q2+15}, v48, vcc")
    for i in range(8):
        a(f"v_cvt_pk_bf16_f32 v{52+i}, v{Q2+2*i}, v{Q2+2*i+1}")
    a(f"""
    buffer_store_dwordx4 v[52:55], v11, s[48:51], 0 offen
    buffer_store_dwordx4 v[56:59], v11, s[48:51], 0 offen offset:2048
    s_endpgm
    """)

    a.label("K1_WPREP")
    a(f"""
    v_lshrrev_b32 v3, 6, v0
    v_and_b32 v1, 63, v0
    v_readfirstlane_b32 s3, v3
    v_lshlrev_b32 v6, 4, v0
    s_waitcnt lgkmcnt(0)
    """)
    srd(a, 4, 32, 33, 0, 8192)
    a(f"""
    s_movk_i32 s40, 0x1000
    buffer_load_dwordx4 v[24:27], v6, s[4:7], 0 offen
    buffer_load_dwordx4 v[28:31], v6, s[4:7], s40 offen
    s_cmp_ge_u32 s3, 2
    s_cselect_b32 s8, s24, s30
    s_cselect_b32 s9, s25, s31
    s_cselect_b64 vcc, -1, 0
    s_mov_b32 s10, 8192
    s_mov_b32 s11, 0x00020000
    s_and_b32 s41, s3, 1
    s_lshl_b32 s41, s41, 12
    v_and_b32 v2, 31, v0             ; i
    v_lshrrev_b32 v4, 5, v1          ; hi
    v_and_b32 v7, 0x13, v2
    v_bfe_u32 v8, v2, 2, 1
    v_lshl_or_b32 v7, v8, 3, v7
    v_bfe_u32 v8, v2, 3, 1
    v_lshl_or_b32 v7, v8, 2, v7
    v_cndmask_b32 v7, v2, v7, vcc
    v_lshlrev_b32 v7, 7, v7
    v_lshl_add_u32 v7, v4, 4, v7
    v_lshlrev_b32 v8, 4, v4
    v_add_u32 v8, {63*128}, v8
    """)
    for kk in range(4):
        a(f"buffer_load_dwordx4 {vr(32+4*kk,4)}, v7, s[8:11], s41 offen offset:{kk*32}")
    for kk in range(4):
        a(f"buffer_load_dwordx4 {vr(48+4*kk,4)}, v8, s[8:11], 0 offen offset:{kk*32}")
    a(f"""
    v_bfe_u32 v9, v0, 2, 2
    v_lshl_add_u32 v9, v4, 3, v9
    v_lshlrev_b32 v9, 7, v9
    v_bfe_u32 v10, v0, 4, 1
    v_lshl_add_u32 v9, v10, 5, v9
    v_and_b32 v10, 1, v0
    v_lshl_add_u32 v9, v10, 4, v9
    v_bfe_u32 v10, v0, 1, 1
    v_lshl_add_u32 v9, v10, 3, v9
    s_waitcnt vmcnt(8)
    ds_write_b128 v6, v[24:27]
    ds_write_b128 v6, v[28:31] offset:4096
    s_waitcnt lgkmcnt(0)
    s_barrier
    """)
    B = 64
    for Tf in range(2):
        for kk in range(4):
            for b in range(2):
                off = (16*kk + 4*b)*128 + Tf*64
                a(f"ds_read_b64_tr_b16 {vr(B+(Tf*4+kk)*4+2*b,2)}, v9 offset:{off}")
    a("s_waitcnt vmcnt(0)")
    a("s_cbranch_vccnz K1_NOSUB")
    for i in range(16):
        a(f"""
        v_lshlrev_b32 v10, 16, v{32+i}
        v_and_b32 v11, 0xffff0000, v{32+i}
        v_lshlrev_b32 v12, 16, v{48+i}
        v_and_b32 v13, 0xffff0000, v{48+i}
        v_sub_f32 v10, v10, v12
        v_sub_f32 v11, v11, v13
        v_cvt_pk_bf16_f32 v{32+i}, v10, v11
        """)
    a.label("K1_NOSUB")
    a("s_waitcnt lgkmcnt(0)")
    a("s_nop 1")
    D = 96
    for Tf in range(2):
        for kk in range(4):
            cc = "0" if kk == 0 else vr(D+16*Tf, 16)
            a(f"v_mfma_f32_32x32x16_bf16 {vr(D+16*Tf,16)}, {vr(32+4*kk,4)}, {vr(B+(Tf*4+kk)*4,4)}, {cc}")
    a(f"s_lshr_b32 s42, s3, 1")
    a(f"s_lshl_b32 s42, s42, 13")
    a(f"s_add_u32 s42, s42, {hex(WF)}")
    srd(a, 12, 38, 39, "s42", 8192)
    a(f"s_lshr_b32 s41, s41, 1")
    a(f"v_lshlrev_b32 v6, 4, v1")
    a(f"s_add_u32 s43, s41, 0x1000")
    for Tf in range(2):
        for i in range(8):
            a(f"v_cvt_pk_bf16_f32 v{32+8*Tf+i}, v{D+16*Tf+2*i}, v{D+16*Tf+2*i+1}")
        for rho in range(2):
            a(f"buffer_store_dwordx4 {vr(32+8*Tf+4*rho,4)}, v6, s[12:15], {'s43' if Tf else 's41'} offen offset:{rho*1024}")
    a.label("K1_END")
    a("s_endpgm")
    return kd("prep_kernel", 128)
```

```python
from common import *
import os
DIAG = int(os.environ.get("DIAG", "0"))
DIAGOFF = 0x1800000
def stamp(a, reg):
    if DIAG:
        a(f"s_memtime s[{reg}:{reg+1}]")
        a("s_waitcnt lgkmcnt(0)")
def diag_store(a):
    if not DIAG: return
    a("s_mov_b64 exec, -1")
    stamp(a, 76)
    a("s_memrealtime s[78:79]")
    a("s_getreg_b32 s80, hwreg(HW_REG_HW_ID)")
    a("s_getreg_b32 s81, hwreg(HW_REG_XCC_ID)")
    a("s_waitcnt lgkmcnt(0)")
    srd(a, 84, 4, 5, DIAGOFF, 0x100000)
    a("s_lshl_b32 s82, s2, 3")
    a("s_add_u32 s82, s82, s3")
    a("s_lshl_b32 s82, s82, 5")
    for i, r in enumerate([80, 81, 90, 72, 74, 76, 68, 78]):
        a(f"v_mov_b32 v{200+i}, s{r}")
    a("v_mov_b32 v208, 0")
    a("buffer_store_dwordx4 v[200:203], v208, s[84:87], s82 offen")
    a("buffer_store_dwordx4 v[204:207], v208, s[84:87], s82 offen offset:16")
K2_GRID = 245
RING = int(os.environ.get("RING", "16"))
G = int(os.environ.get("G", "4"))
DEPTH = int(os.environ.get("DEPTH", "4"))
BR = int(os.environ.get("BR", "4"))
DD = RING - 1 - BR
YOUNG = RING - 2 - 2*BR
CNT = RING * 4096
LB = CNT + 512
LSTR = 264
K2_LDS = LB + 20480

KA = 2
VA = 6
O = 16
Q = 80
S = 112
P = 144
KF = 160
VF = 192
def rO(X, T): return vr(O + 32*X + 16*T, 16)
def rQ(X, kk): return vr(Q + 16*X + 4*kk, 4)
def rS(X): return vr(S + 16*X, 16)
def rP(X, u): return vr(P + 8*X + 4*u, 4)
def rK(b, kk): return vr(KF + 16*b + 4*kk, 4)
def rV(b, u, T): return vr(VF + 16*b + 8*u + 4*T, 4)

def qk(X, kb, kk):
    c = "0" if kk == 0 else rS(X)
    return f"v_mfma_f32_32x32x16_bf16 {rS(X)}, {rK(kb,kk)}, {rQ(X,kk)}, {c}"
def pv(X, vb, j):
    u, T = j >> 1, j & 1
    return f"v_mfma_f32_32x32x16_bf16 {rO(X,T)}, {rV(vb,u,T)}, {rP(X,u)}, {rO(X,T)}"
def rdK(slot, kb, kk):
    return f"ds_read_b128 {rK(kb,kk)}, v{KA+kk} offset:{slot*4096}"
def rdV(slot, vb, u, T, b):
    d = VF + 16*vb + 8*u + 4*T + 2*b
    return f"ds_read_b64_tr_b16 {vr(d,2)}, v{VA+2*T+b} offset:{slot*4096 + u*2048}"
def ex(X, e): return f"v_exp_f32 v{S+16*X+e}, v{S+16*X+e}"
def cv(X, j): return f"v_cvt_pk_bf16_f32 v{P+8*X+j}, v{S+16*X+2*j}, v{S+16*X+2*j+1}"
def gap_valu(g):
    n = (g + 1) % 16
    Xn, jn = (1 if n < 8 else 0), n & 7
    X, j = (1 if g < 8 else 0), g & 7
    return [ex(Xn, 2*jn), ex(Xn, 2*jn+1), cv(X, j)]
YIELD = os.environ.get("YIELD", "")
def reads(p):
    r = [rdK((p+1) % RING, (p+1) & 1, kk) for kk in range(4)]
    r += [rdV(p % RING, p & 1, u, T, b) for u in range(2) for T in range(2) for b in range(2)]
    return r

CHECK = (13, 14)
def round_body(a, p, exit_label):
    kb = p & 1; vb = (p+1) & 1
    mf = [qk(0, kb, k) for k in range(4)] + [pv(0, vb, j) for j in range(4)] + \
         [qk(1, kb, k) for k in range(4)] + [pv(1, vb, j) for j in range(4)]
    rd = reads(p)
    nv = rd[:3] + ["s_waitcnt lgkmcnt(3)"] + rd[3:]
    nv += ["s_barrier" if p % BR == BR - 1 else ""]
    if p in CHECK:
        nv += ["s_sub_u32 s12, s12, 1\ns_waitcnt lgkmcnt(8)", f"s_cbranch_scc1 {exit_label}"]
    else:
        nv += ["s_waitcnt lgkmcnt(8)", ""]
    for g in range(16):
        a(mf[g]); a(nv[g])
        for op in gap_valu(g): a(op)

def gen_attention(a):
    a(f"""
    s_setprio {int(os.environ.get("PRIO_A", "0"))}
    v_and_b32 v1, 63, v0
    v_lshlrev_b32 v10, 4, v1
    s_lshl_b32 s13, s8, 3
    s_lshl_b32 s14, s3, 1
    s_add_u32 s13, s13, s14
    s_lshl_b32 s14, s13, 12
    s_add_u32 s15, s14, 0x1000
    s_waitcnt lgkmcnt(0)
    """)
    srd(a, 16, 4, 5, QF, NT32*4096)
    for X in range(2):
        for kk in range(4):
            a(f"buffer_load_dwordx4 {rQ(X,kk)}, v10, s[16:19], s{14+X} offen offset:{kk*1024}")
    a(f"""
    v_and_b32 v11, 31, v0            ; row i
    v_lshrrev_b32 v12, 5, v1         ; hi
    v_bfe_u32 v13, v11, 1, 1
    v_lshlrev_b32 v13, 2, v13
    v_bfe_u32 v14, v11, 2, 2
    v_or_b32 v13, v13, v14           ; f(i)
    v_xor_b32 v13, v13, v12          ; hi ^ f
    v_lshlrev_b32 v11, 7, v11
    """)
    for kk in range(4):
        a(f"v_xor_b32 v14, {2*kk}, v13")
        a(f"v_lshl_add_u32 v{KA+kk}, v14, 4, v11")
    a(f"""
    v_bfe_u32 v11, v0, 2, 2          ; rr
    v_lshl_add_u32 v13, v12, 2, v11  ; 4hi+rr
    v_lshlrev_b32 v13, 7, v13
    v_and_b32 v14, 1, v0
    v_lshl_add_u32 v13, v14, 3, v13  ; + (c4&1)*8
    v_bfe_u32 v14, v0, 4, 1
    v_lshlrev_b32 v14, 1, v14
    v_bfe_u32 v15, v0, 1, 1
    v_or_b32 v14, v14, v15           ; 2x + (c4>>1)
    v_lshrrev_b32 v11, 1, v11
    v_lshl_or_b32 v11, v11, 2, v12
    v_xor_b32 v14, v14, v11
    """)
    for T in range(2):
        for b in range(2):
            a(f"v_xor_b32 v15, {(4*T) ^ (2*b)}, v14")
            a(f"v_lshl_add_u32 v{VA+2*T+b}, v15, 4, v13")
            if b: a(f"v_add_u32 v{VA+2*T+b}, {8*128}, v{VA+2*T+b}")
    for i in range(64):
        a(f"v_mov_b32 v{O+i}, 0")
    assert RING == 16
    a("s_sub_u32 s12, s11, 70")
    a("s_barrier")
    for kk in range(4): a(rdK(0, 0, kk))
    a("s_waitcnt vmcnt(0) lgkmcnt(0)")
    rd = reads(0)
    for k in range(4):
        a(qk(0, 0, k)); a(rd[k])
    for k in range(4):
        a(qk(1, 0, k)); a(rd[4+2*k]); a(rd[5+2*k])
    if BR == 1: a("s_barrier")
    for op in gap_valu(7)[:2]: a(op)
    for g in range(8, 16):
        for op in gap_valu(g): a(op)
    a("s_waitcnt lgkmcnt(0)")
    stamp(a, 72)
    a("s_branch K2_R1")
    a.raw(".p2align 6")
    a.label("K2_R0")
    for p in range(RING):
        if p == 1: a.label("K2_R1")
        round_body(a, p, f"K2_E{p&1}")
    a("s_branch K2_R0")
    for par in range(2):
        a.label(f"K2_E{par}")
        a("s_waitcnt lgkmcnt(0)")
        for op in gap_valu(15): a(op)
        vb = par
        for g in range(8):
            if g % 2 == 0: a(pv(0, vb, g // 2))
            for op in (gap_valu(g) if g < 7 else gap_valu(g)[2:]): a(op)
        for j in range(4): a(pv(1, vb, j))
        if par == 0: a("s_branch K2_EPI")
    a.label("K2_EPI")
    stamp(a, 74)
    a(f"""
    s_mul_i32 s20, s9, 392
    s_add_u32 s20, s20, s13
    s_lshl_b32 s20, s20, 12
    s_add_u32 s21, s20, 0x1000
    s_mul_i32 s22, s9, {QROWS*4}
    s_lshl_b32 s23, s13, 7
    s_add_u32 s22, s22, s23
    """)
    srd(a, 16, 4, 5, PO, 5*392*4096)
    srd(a, 24, 4, 5, PL, 5*QROWS*4)
    a("v_and_b32 v11, 31, v0")
    a("v_lshlrev_b32 v11, 2, v11")
    a("s_nop 7")
    for X in range(2):
        for T in range(2):
            for i in range(8):
                a(f"v_cvt_pk_bf16_f32 v{S+16*X+8*T+i}, v{O+32*X+16*T+2*i}, v{O+32*X+16*T+2*i+1}")
            for rho in range(2):
                a(f"buffer_store_dwordx4 {vr(S+16*X+8*T+4*rho,4)}, v10, s[16:19], s{20+X} offen offset:{(2*T+rho)*1024}")
    a("s_mov_b32 exec_lo, 0")
    for X in range(2):
        a(f"buffer_store_dword v{O+32*X+31}, v11, s[24:27], s22 offen offset:{X*128}")
    diag_store(a)
    a("s_endpgm")

VDMA = 2; VCNT = 3; VSEG = 4; VLP = 5; VLP1 = 6; VHL = 7; VDI = 8
VTWO = 10; VT = 11
IDX = 16
A16 = 24
A32 = 28
RK = 36
AD = 44
VNB = 54
VLA = 52
EN = 56
DS_ = 104
NSET = DEPTH + 1

class VM:
    def __init__(self): self.q = []; self.tile = 0
    def issue(self, tag): self.q.append(tag)
    def after(self, tag):
        i = len(self.q) - 1 - self.q[::-1].index(tag)
        return len(self.q) - 1 - i
    def copy(self):
        v = VM(); v.q = list(self.q); v.tile = self.tile; return v

def dma(a, vm=None):
    a(f"""
    s_and_b32 s41, s14, {hex(RING*4096-1)}
    s_add_u32 m0, s41, s15
    s_nop 0
    buffer_load_dwordx4 v{VDMA}, s[16:19], s14 offen lds
    s_add_u32 s14, s14, 0x1000
    """)
    if vm is not None:
        vm.issue(("t", vm.tile)); vm.tile += 1
def dma_slice(a, vm, r):
    n = 0
    while vm.tile <= r + DD and n < 2:
        dma(a, vm); n += 1
def dyn_end(a, n, label, mid=None):
    a(f"s_cmp_lg_u32 s12, s70")
    if mid: mid()
    a(f"s_cbranch_scc1 {label}")
    if n is not None: a(f"s_waitcnt vmcnt({min(n, 63)})")
    a("s_barrier")
    a(f"s_add_u32 s70, s70, {BR}")
    a(f"s_cmp_ge_u32 s70, s11")
    a(f"s_cselect_b32 s70, -1, s70")
    a.label(label)
    a("s_add_u32 s12, s12, 1")

def flush1(a, i):
    a(f"v_add_u32_sdwa v{A32+2*i}, v{A16+i}, v{A32+2*i} dst_sel:DWORD dst_unused:UNUSED_PAD src0_sel:WORD_0 src1_sel:DWORD")
    a(f"v_add_u32_sdwa v{A32+2*i+1}, v{A16+i}, v{A32+2*i+1} dst_sel:DWORD dst_unused:UNUSED_PAD src0_sel:WORD_1 src1_sel:DWORD")
def finalize(a, rho, from_int=True):
    if from_int:
        for i in range(4): flush1(a, i)
        for i in range(8):
            a(f"v_cvt_f32_i32 v{A32+i}, v{A32+i}")
    for i in range(8):
        a(f"v_mul_f32 v{A32+i}, v{A32+i}, v{VDI+rho}")
    for i in range(4):
        a(f"v_cvt_pk_bf16_f32 v{VT+1+i}, v{A32+2*i}, v{A32+2*i+1}")
    a(f"buffer_store_dwordx4 {vr(VT+1,4)}, v{VHL}, s[28:31], {'s42' if rho else '0'} offen")
    if from_int and rho == 0:
        for i in range(8):
            a(f"v_mov_b32 v{A32+i}, v{VNB}")
        for i in range(4):
            a(f"v_mov_b32 v{A16+i}, 0")

def gen_aux(a):
    vm = VM()
    a.label("K2_AUX")
    a(f"""
    s_setprio {int(os.environ.get("PRIO_X", "3"))}
    s_sub_u32 s13, s3, 4
    s_lshl_b32 s15, s13, 10
    v_and_b32 v1, 63, v0
    v_lshlrev_b32 v{VDMA}, 4, v1
    v_add_u32 v{VDMA}, s15, v{VDMA}
    s_lshl_b32 s41, s10, 12
    s_add_u32 s41, s41, {hex(HI)}
    s_lshl_b32 s42, s11, 12
    s_mov_b32 s14, 0
    s_mov_b32 s40, 0
    v_subrev_u32 v{VT}, 256, v0           ; ta
    s_mov_b32 s43, {CHUNK_B}
    v_mul_lo_u32 v{VSEG}, v{VT}, s43
    s_lshl_b32 s43, s64, 2
    s_waitcnt lgkmcnt(0)
    """)
    srd(a, 16, 4, 5, "s41", "s42")
    dma(a, vm); dma(a, vm)
    srd(a, 20, 4, 5, BINS, NCHUNK*CHUNK_B)
    a(f"buffer_load_dword v{VCNT}, v{VSEG}, s[20:23], s43 offen"); vm.issue("desc")
    for i in range(max(2, BR - 1)): dma(a, vm)
    srd(a, 24, 4, 5, T16, N, stride=128)
    a(f"s_lshl_b32 s41, s64, 13")
    a(f"s_add_u32 s41, s41, {hex(HL)}")
    srd(a, 28, 4, 5, "s41", 8192)
    srd(a, 32, 6, 7, 0, N*2)
    a(f"""
    v_mov_b32 v{VT+1}, -1
    v_mov_b32 v{VT+2}, -1
    v_mov_b32 v{VT+3}, -1
    v_mov_b32 v{VT+4}, -1
    v_lshlrev_b32 v{VT}, 4, v{VT}
    v_add_u32 v{VT}, {LB}, v{VT}
    """)
    for i in range(5):
        a(f"ds_write_b128 v{VT}, {vr(VT+1,4)} offset:{4096*i}")
    a(f"""
    v_mul_u32_u24 v{VT+1}, {LSTR}, v1
    v_add_u32 v{VT+1}, {LB}, v{VT+1}
    v_lshlrev_b32 v{VLA}, 2, v1
    v_add_u32 v{VLA}, {CNT}, v{VLA}
    ds_write_b32 v{VLA}, v{VT+1}
    v_mov_b32 v{VTWO}, 2
    v_mov_b32 v{VLA+1}, {CNT}
    v_lshrrev_b32 v{VT}, 3, v1            ; g
    s_lshl_b32 s41, s13, 3
    v_add_u32 v{VT}, s41, v{VT}
    v_mul_u32_u24 v{VLP}, {LSTR}, v{VT}
    v_add_u32 v{VLP}, {LB}, v{VLP}
    v_add_u32 v{VLP1}, {32*LSTR}, v{VLP}
    v_and_b32 v{VT+1}, 7, v1
    v_lshlrev_b32 v{VT+1}, 4, v{VT+1}     ; c*16
    v_lshl_add_u32 v{VHL}, v{VT}, 7, v{VT+1}
    s_lshl_b32 s41, s64, 6
    v_add_lshl_u32 v{VDI+1}, s41, v{VT}, 1
    """)
    for k in range(G):
        a(f"v_mov_b32 v{IDX+2*k+1}, v{VT+1}")
    for i in range(12): a(f"v_mov_b32 v{A16+i}, 0")
    for i in range(4*G, 4*G*NSET): a(f"v_mov_b32 v{DS_+i}, 0")
    a(f"""
    s_movk_i32 s42, 0x1000
    s_waitcnt vmcnt({vm.after(("t", BR))}) lgkmcnt(0)
    s_barrier
    s_cmp_ge_u32 s64, {NBIN}
    s_cbranch_scc1 K2_IDLE0
    """)
    vm_idle = vm.copy()
    r = 0
    def end(extra=0):
        nonlocal r
        if r % BR == BR - 1:
            a(f"s_waitcnt vmcnt({min(63, vm.after(('t', r + BR + 1 + extra)))})")
            a("s_barrier")
        r += 1
    def to_dynamic():
        a(f"s_mov_b32 s12, {r}")
        a(f"s_mov_b32 s70, {r + (BR - 1 - r) % BR}")
    dma_slice(a, vm, r)
    a(f"buffer_load_ushort v{VDI}, v{VDI+1}, s[32:35], 0 offen"); vm.issue("deg")
    a(f"buffer_load_ushort v{VDI+1}, v{VDI+1}, s[32:35], 0 offen offset:64"); vm.issue("deg")
    end()
    for part in range(3):
        dma_slice(a, vm, r)
        if part == 0:
            a(f"""
            v_and_b32 v{VT}, 0xffff, v{VCNT}
            v_lshl_add_u32 v{VSEG}, v{VT}, 2, v{VSEG}
            v_lshrrev_b32 v{VCNT}, 16, v{VCNT}
            """)
        for k in range(4*part, 4*part + 4):
            if k >= 2:
                a(f"v_cmp_lt_u32 vcc, {4*k}, v{VCNT}")
                a(f"s_or_b64 exec, vcc, 1")
            a(f"buffer_load_dwordx4 {vr(EN+4*k,4)}, v{VSEG}, s[20:23], 0 offen offset:{1024+16*k}"); vm.issue(("seg", part))
        a("s_mov_b64 exec, -1")
        if part == 0:
            a(f"""
            v_cmp_lt_u32 vcc, 48, v{VCNT}
            s_and_saveexec_b64 s[48:49], vcc
            v_mov_b32 v{VT+1}, 0x10000
            ds_add_u32 v{VLA+1}, v{VT+1}
            s_mov_b64 exec, -1
            """)
        end()
    a("s_mov_b64 s[62:63], -1")
    for sl in range(6):
        dma_slice(a, vm, r)
        if sl % 2 == 0: a(f"s_waitcnt vmcnt({vm.after(('seg', sl // 2))})")
        a(f"s_cmp_eq_u64 s[62:63], 0")
        a(f"s_cbranch_scc1 K2_INS{sl}")
        a("s_mov_b64 exec, s[62:63]")
        for j in range(8):
            e = sl*8 + j
            a(f"v_cmpx_lt_u32 s[{48+2*j}:{49+2*j}], {e}, v{VCNT}")
            if CNT < 65536:
                a(f"v_bfe_u32 v{AD+j}, v{EN+e}, 16, 8")
                a(f"ds_add_rtn_u32 v{RK+j}, v{AD+j}, v{VTWO} offset:{CNT}")
            else:
                a(f"v_perm_b32 v{AD+j}, v{VLA+1}, v{EN+e}, s65")
                a(f"ds_add_rtn_u32 v{RK+j}, v{AD+j}, v{VTWO}")
        a(f"s_waitcnt lgkmcnt(0)")
        for j in range(8):
            e = sl*8 + j
            a(f"s_mov_b64 exec, s[{48+2*j}:{49+2*j}]")
            a(f"v_min_u32 v{RK+j}, {LB+64*LSTR}, v{RK+j}")
            a(f"ds_write_b16 v{RK+j}, v{EN+e}")
        a("s_mov_b64 exec, -1")
        a.label(f"K2_INS{sl}")
        a("s_waitcnt lgkmcnt(0)")
        end()
    while r % BR:
        dma_slice(a, vm, r); end()
    dma_slice(a, vm, r)
    a(f"""
    ds_read_b32 v{VT}, v{VLA}
    v_lshrrev_b32 v{VT+2}, 3, v1
    s_lshl_b32 s41, s13, 5
    s_add_u32 s41, s41, {CNT}
    v_lshl_add_u32 v{VT+2}, v{VT+2}, 2, s41
    ds_read_b32 v{VT+3}, v{VT+2}
    ds_read_b32 v{VNB}, v{VT+2} offset:128
    v_mul_u32_u24 v{VT+1}, {LSTR}, v1
    v_lshlrev_b32 v{VDI}, 16, v{VDI}
    v_lshlrev_b32 v{VDI+1}, 16, v{VDI+1}
    v_mul_f32 v{VDI}, {hex(f32bits(1/TSC))}, v{VDI}
    v_mul_f32 v{VDI+1}, {hex(f32bits(1/TSC))}, v{VDI+1}
    """)
    for k in range(G):
        a(f"ds_read_u16 v{IDX+2*k}, v{VLP} offset:{2*k}")
    a(f"""
    s_waitcnt lgkmcnt({G})
    v_sub_u32 v{VT}, v{VT}, v{VT+1}
    v_subrev_u32 v{VT}, {LB}, v{VT}
    v_cmp_lt_u32 vcc, 256, v{VT}
    s_cmp_lg_u64 vcc, 0
    s_cselect_b32 s40, 1, 0
    v_sub_u32 v{VT+3}, v{VLP}, v{VT+3}    ; -2*count
    v_sub_u32 v{VNB}, v{VLP1}, v{VNB}
    v_mul_i32_i24 v{VT+3}, {TBIAS//2}, v{VT+3}
    v_mul_i32_i24 v{VNB}, {TBIAS//2}, v{VNB}
    """)
    for i in range(8): a(f"v_mov_b32 v{A32+i}, v{VT+3}")
    for sh in (1, 2, 4):
        a(f"v_max_u32_dpp v{VT}, v{VT}, v{VT} row_shr:{sh} row_mask:0xf bank_mask:0xf bound_ctrl:0")
    magic = (1 << 16) // (2*G) + 1
    a(f"""
    s_lshl_b32 s41, s13, 3
    s_add_u32 s41, s41, 7
    s_add_u32 s43, s41, 32
    v_readlane_b32 s36, v{VT}, s41
    v_readlane_b32 s37, v{VT}, s43
    s_add_u32 s36, s36, {2*G-1}
    s_mul_i32 s36, s36, {magic}
    s_lshr_b32 s36, s36, 16
    s_max_u32 s36, s36, 1
    s_add_u32 s37, s37, {2*G-1}
    s_mul_i32 s37, s37, {magic}
    s_lshr_b32 s37, s37, 16
    s_max_u32 s37, s37, 1
    s_add_u32 s37, s37, s36
    s_mov_b32 s38, 0
    s_mov_b32 s39, {-DEPTH}
    """)
    assert vm.tile == r + DD + 1, (vm.tile, r)
    assert YOUNG - 1 >= DEPTH - 1
    a(f"s_waitcnt vmcnt({vm.after(('t', min(vm.tile - 1, r + DEPTH + BR + 1)))})")
    end()
    to_dynamic()
    a("s_cmp_lg_u32 s40, 0")
    a("s_cbranch_scc1 K2_IDLE")
    stamp(a, 72)
    a.label("K2_G")
    assert G == 4 and NSET >= 5 and NSET * G <= 20
    for s in range(NSET):
        c = DS_ + 4*G*((s+1) % NSET)
        adds = []
        for h in range(2):
            for i in range(4):
                acc = "0" if (h == 0 and s >= 1 and i == s - 1) else f"v{A16+i}"
                adds.append(f"v_add3_u32 v{A16+i}, v{c+8*h+i}, v{c+8*h+4+i}, {acc}")
        nxt = (s + 1) % NSET
        if os.environ.get("NOADD"): adds = ["s_nop 0"] * 8
        ld = [f"buffer_load_dwordx4 {vr(DS_+4*G*s+4*k,4)}, {vr(IDX+2*k,2)}, s[24:27], 0 idxen offen" for k in range(G)]
        if os.environ.get("NOLD"): ld = ["s_nop 0"] * 4
        rd = [f"ds_read_u16 v{IDX+2*k}, v{VLP} offset:{2*G*nxt+2*k}" for k in range(G)]
        a(f"""
        s_waitcnt vmcnt({(DEPTH-1)*(G+1) if not os.environ.get("NOLD") else 8}) lgkmcnt(0)
        {adds[0]}
        {ld[0]}
        s_and_b32 s41, s14, {hex(RING*4096-1)}
        {adds[1]}
        {ld[1]}
        s_add_u32 m0, s41, s15
        {adds[2]}
        {ld[2]}
        s_add_u32 s38, s38, 1
        {adds[3]}
        {ld[3]}
        s_cmp_lg_u32 s38, s36
        """)
        if nxt == 0: a(f"v_add_u32 v{VLP}, {2*G*NSET}, v{VLP}")
        a(f"""
        s_cbranch_scc1 K2_GA{s}
        v_subrev_u32 v{VLP}, {2*G*nxt}, v{VLP1}
        K2_GA{s}:
        {adds[4]}
        buffer_load_dwordx4 v{VDMA}, s[16:19], s14 offen lds
        s_add_u32 s14, s14, 0x1000
        {adds[5]}
        {rd[0]}
        {rd[1]}
        s_add_u32 s39, s39, 1
        {adds[6]}
        {rd[2]}
        {rd[3]}
        s_cmp_eq_u32 s39, s37
        {adds[7]}
        s_cbranch_scc1 K2_GDONE
        s_cmp_lg_u32 s39, s36
        s_cbranch_scc1 K2_GB{s}
        """)
        finalize(a, 0)
        a.label(f"K2_GB{s}")
        dyn_end(a, None, f"K2_GC{s}", (lambda: flush1(a, s)) if s < 4 and not os.environ.get('NOADD') else None)
    a("s_branch K2_G")
    a.label("K2_GDONE")
    stamp(a, 74)
    finalize(a, 1)
    dyn_end(a, YOUNG, "K2_GCX")
    a("s_branch K2_IDLE")
    a.label("K2_IDLE0")
    vm = vm_idle; r = 0
    while vm.tile < r + DD:
        dma_slice(a, vm, r); end()
    assert vm.tile == r + DD
    to_dynamic()
    a.label("K2_IDLE")
    a("s_cmp_eq_u32 s70, -1")
    a("s_cbranch_scc1 K2_AEND")
    dma(a)
    dyn_end(a, YOUNG, "K2_IC")
    a("s_branch K2_IDLE")
    a.label("K2_AEND")
    diag_store(a)
    a("s_cmp_eq_u32 s40, 0")
    a("s_cbranch_scc1 K2_END")
    gen_slow(a)

def gen_slow(a):
    ACC = LB
    a(f"""
    s_waitcnt vmcnt(0) lgkmcnt(0)
    s_barrier
    v_subrev_u32 v{VT}, 256, v0
    v_lshlrev_b32 v{VT}, 4, v{VT}
    v_add_u32 v{VT}, {ACC}, v{VT}
    v_mov_b32 v{VT+1}, 0
    v_mov_b32 v{VT+2}, 0
    v_mov_b32 v{VT+3}, 0
    v_mov_b32 v{VT+4}, 0
    """)
    for i in range(4):
        a(f"ds_write_b128 v{VT}, {vr(VT+1,4)} offset:{4096*i}")
    a(f"""
    s_waitcnt lgkmcnt(0)
    s_barrier
    s_mov_b32 s44, s13
    v_lshrrev_b32 v{RK}, 3, v1         ; g
    v_and_b32 v{RK+1}, 7, v1
    v_lshlrev_b32 v{RK+1}, 5, v{RK+1}
    v_add_u32 v{RK+1}, {ACC}, v{RK+1}
    K2_S0:
    s_mul_i32 s45, s44, {CHUNK_B}
    s_lshl_b32 s46, s64, 2
    s_add_u32 s46, s46, s45
    v_mov_b32 v{VT}, 0
    buffer_load_dword v{VT+1}, v{VT}, s[20:23], s46 offen
    s_waitcnt vmcnt(0)
    v_readfirstlane_b32 s46, v{VT+1}
    s_lshr_b32 s47, s46, 16            ; count
    s_and_b32 s46, s46, 0xffff
    s_lshl_b32 s46, s46, 2
    s_add_u32 s45, s45, s46
    v_mov_b32 v{RK+2}, v{RK}
    K2_S1:
    v_cmp_gt_u32 vcc, s47, v{RK+2}
    s_and_saveexec_b64 s[48:49], vcc
    s_cbranch_execz K2_S2
    v_lshlrev_b32 v{VT}, 2, v{RK+2}
    buffer_load_dword v{VT+1}, v{VT}, s[20:23], s45 offen offset:1024
    s_waitcnt vmcnt(0)
    v_and_b32 v{IDX}, 0xffff, v{VT+1}
    buffer_load_dwordx4 {vr(DS_,4)}, {vr(IDX,2)}, s[24:27], 0 idxen offen
    v_bfe_u32 v{VT}, v{VT+1}, 18, 6
    v_lshl_add_u32 v{VT}, v{VT}, 8, v{RK+1}
    s_waitcnt vmcnt(0)
    """)
    for i in range(4):
        a(f"v_cvt_f32_u32_sdwa v{A32+2*i}, v{DS_+i} dst_sel:DWORD dst_unused:UNUSED_PAD src0_sel:WORD_0")
        a(f"v_cvt_f32_u32_sdwa v{A32+2*i+1}, v{DS_+i} dst_sel:DWORD dst_unused:UNUSED_PAD src0_sel:WORD_1")
    for i in range(8):
        a(f"v_subrev_f32 v{A32+i}, {hex(f32bits(float(TBIAS)))}, v{A32+i}")
    for i in range(8):
        a(f"ds_add_f32 v{VT}, v{A32+i} offset:{4*i}")
    a(f"""
    s_mov_b64 exec, -1
    v_add_u32 v{RK+2}, 8, v{RK+2}
    s_branch K2_S1
    K2_S2:
    s_mov_b64 exec, -1
    s_add_u32 s44, s44, 4
    s_cmp_lt_u32 s44, {NCHUNK}
    s_cbranch_scc1 K2_S0
    s_waitcnt lgkmcnt(0)
    s_barrier
    v_lshlrev_b32 v{VT}, 1, v{VHL}      ; local*256 + c*32
    v_add_u32 v{VT}, {ACC}, v{VT}
    """)
    for rho in range(2):
        a(f"ds_read_b128 {vr(A32,4)}, v{VT} offset:{8192*rho}")
        a(f"ds_read_b128 {vr(A32+4,4)}, v{VT} offset:{8192*rho+16}")
        a("s_waitcnt lgkmcnt(0)")
        finalize(a, rho, from_int=False)

def gen_k2(a):
    header(a, "attn_kernel")
    a(f"""
    s_cmp_ge_u32 s2, {K2_GRID}
    s_cbranch_scc1 K2_END
    s_load_dwordx2 s[4:5], s[0:1], 88
    s_load_dwordx2 s[6:7], s[0:1], 24
    """)
    if DIAG:
        a("s_memrealtime s[68:69]")
        stamp(a, 90)
        a("s_mov_b32 s72, 0")
        a("s_mov_b32 s74, 0")
    a(f"""
    v_lshrrev_b32 v1, 6, v0
    s_and_b32 s66, s2, 7
    s_lshr_b32 s67, s2, 3               ; j
    v_readfirstlane_b32 s3, v1
    s_mul_i32 s8, s67, 52
    s_lshr_b32 s8, s8, 8                ; j / 5
    s_mul_i32 s9, s8, 5
    s_sub_u32 s9, s67, s9               ; split = j % 5
    s_lshl_b32 s8, s8, 3
    s_add_u32 s8, s8, s66               ; q block
    s_mul_i32 s64, s66, 25
    s_add_u32 s64, s64, s67
    s_cmp_lt_u32 s67, 25
    s_cselect_b32 s64, s64, 255
    s_cmp_ge_u32 s2, 240
    s_cselect_b32 s8, 48, s8
    s_cselect_b32 s9, s66, s9
    s_mov_b32 s65, 0x0c060c02
    s_mul_i32 s10, s9, 78
    s_cmp_lg_u32 s9, 0
    s_addc_u32 s10, s10, 0
    s_mov_b32 s11, 78
    s_cmp_eq_u32 s9, 0
    s_addc_u32 s11, s11, 0
    s_cmp_ge_u32 s3, 4
    s_cbranch_scc1 K2_AUX
    """)
    gen_attention(a)
    gen_aux(a)
    a.label("K2_END")
    a("s_endpgm")
    return kd("attn_kernel", max(224, DS_ + 4*G*NSET))
```

```python
from common import *
import os
DIAG = int(os.environ.get("DIAG", "0"))
DIAGOFF = 0x1800000
def stamp(a, reg):
    if DIAG:
        a(f"s_memtime s[{reg}:{reg+1}]")
        a("s_waitcnt lgkmcnt(0)")
def diag_store(a):
    if not DIAG: return
    a("s_mov_b64 exec, -1")
    stamp(a, 76)
    a("s_memrealtime s[78:79]")
    a("s_getreg_b32 s80, hwreg(HW_REG_HW_ID)")
    a("s_getreg_b32 s81, hwreg(HW_REG_XCC_ID)")
    a("s_waitcnt lgkmcnt(0)")
    srd(a, 84, 4, 5, DIAGOFF, 0x100000)
    a("s_lshl_b32 s82, s2, 3")
    a("s_add_u32 s82, s82, s3")
    a("s_lshl_b32 s82, s82, 5")
    for i, r in enumerate([80, 81, 90, 72, 74, 76, 68, 78]):
        a(f"v_mov_b32 v{200+i}, s{r}")
    a("v_mov_b32 v208, 0")
    a("buffer_store_dwordx4 v[200:203], v208, s[84:87], s82 offen")
    a("buffer_store_dwordx4 v[204:207], v208, s[84:87], s82 offen offset:16")
K2_GRID = 245
RING = int(os.environ.get("RING", "16"))
G = int(os.environ.get("G", "4"))
DEPTH = int(os.environ.get("DEPTH", "4"))
BR = int(os.environ.get("BR", "4"))
DD = RING - 1 - BR
YOUNG = RING - 2 - 2*BR
CNT = RING * 4096
LB = CNT + 512
LSTR = 264
K2_LDS = LB + 20480

KA = 2
VA = 6
O = 16
Q = 80
S = 112
P = 144
KF = 160
VF = 192
def rO(X, T): return vr(O + 32*X + 16*T, 16)
def rQ(X, kk): return vr(Q + 16*X + 4*kk, 4)
def rS(X): return vr(S + 16*X, 16)
def rP(X, u): return vr(P + 8*X + 4*u, 4)
def rK(b, kk): return vr(KF + 16*b + 4*kk, 4)
def rV(b, u, T): return vr(VF + 16*b + 8*u + 4*T, 4)

def qk(X, kb, kk):
    c = "0" if kk == 0 else rS(X)
    return f"v_mfma_f32_32x32x16_bf16 {rS(X)}, {rK(kb,kk)}, {rQ(X,kk)}, {c}"
def pv(X, vb, j):
    u, T = j >> 1, j & 1
    return f"v_mfma_f32_32x32x16_bf16 {rO(X,T)}, {rV(vb,u,T)}, {rP(X,u)}, {rO(X,T)}"
def rdK(slot, kb, kk):
    return f"ds_read_b128 {rK(kb,kk)}, v{KA+kk} offset:{slot*4096}"
def rdV(slot, vb, u, T, b):
    d = VF + 16*vb + 8*u + 4*T + 2*b
    return f"ds_read_b64_tr_b16 {vr(d,2)}, v{VA+2*T+b} offset:{slot*4096 + u*2048}"
def ex(X, e): return f"v_exp_f32 v{S+16*X+e}, v{S+16*X+e}"
def cv(X, j): return f"v_cvt_pk_bf16_f32 v{P+8*X+j}, v{S+16*X+2*j}, v{S+16*X+2*j+1}"
def gap_valu(g):
    n = (g + 1) % 16
    Xn, jn = (1 if n < 8 else 0), n & 7
    X, j = (1 if g < 8 else 0), g & 7
    return [ex(Xn, 2*jn), ex(Xn, 2*jn+1), cv(X, j)]
YIELD = os.environ.get("YIELD", "")
def reads(p):
    r = [rdK((p+1) % RING, (p+1) & 1, kk) for kk in range(4)]
    r += [rdV(p % RING, p & 1, u, T, b) for u in range(2) for T in range(2) for b in range(2)]
    return r

CHECK = (13, 14)
def round_body(a, p, exit_label):
    kb = p & 1; vb = (p+1) & 1
    mf = [qk(0, kb, k) for k in range(4)] + [pv(0, vb, j) for j in range(4)] + \
         [qk(1, kb, k) for k in range(4)] + [pv(1, vb, j) for j in range(4)]
    rd = reads(p)
    nv = rd[:3] + ["s_waitcnt lgkmcnt(3)"] + rd[3:]
    nv += ["s_barrier" if p % BR == BR - 1 else ""]
    if p in CHECK:
        nv += ["s_sub_u32 s12, s12, 1\ns_waitcnt lgkmcnt(8)", f"s_cbranch_scc1 {exit_label}"]
    else:
        nv += ["s_waitcnt lgkmcnt(8)", ""]
    for g in range(16):
        a(mf[g]); a(nv[g])
        for op in gap_valu(g): a(op)

def gen_attention(a):
    a(f"""
    s_setprio {int(os.environ.get("PRIO_A", "0"))}
    v_and_b32 v1, 63, v0
    v_lshlrev_b32 v10, 4, v1
    s_lshl_b32 s13, s8, 3
    s_lshl_b32 s14, s3, 1
    s_add_u32 s13, s13, s14
    s_lshl_b32 s14, s13, 12
    s_add_u32 s15, s14, 0x1000
    s_waitcnt lgkmcnt(0)
    """)
    srd(a, 16, 4, 5, QF, NT32*4096)
    for X in range(2):
        for kk in range(4):
            a(f"buffer_load_dwordx4 {rQ(X,kk)}, v10, s[16:19], s{14+X} offen offset:{kk*1024}")
    a(f"""
    v_and_b32 v11, 31, v0            ; row i
    v_lshrrev_b32 v12, 5, v1         ; hi
    v_bfe_u32 v13, v11, 1, 1
    v_lshlrev_b32 v13, 2, v13
    v_bfe_u32 v14, v11, 2, 2
    v_or_b32 v13, v13, v14           ; f(i)
    v_xor_b32 v13, v13, v12          ; hi ^ f
    v_lshlrev_b32 v11, 7, v11
    """)
    for kk in range(4):
        a(f"v_xor_b32 v14, {2*kk}, v13")
        a(f"v_lshl_add_u32 v{KA+kk}, v14, 4, v11")
    a(f"""
    v_bfe_u32 v11, v0, 2, 2          ; rr
    v_lshl_add_u32 v13, v12, 2, v11  ; 4hi+rr
    v_lshlrev_b32 v13, 7, v13
    v_and_b32 v14, 1, v0
    v_lshl_add_u32 v13, v14, 3, v13  ; + (c4&1)*8
    v_bfe_u32 v14, v0, 4, 1
    v_lshlrev_b32 v14, 1, v14
    v_bfe_u32 v15, v0, 1, 1
    v_or_b32 v14, v14, v15           ; 2x + (c4>>1)
    v_lshrrev_b32 v11, 1, v11
    v_lshl_or_b32 v11, v11, 2, v12
    v_xor_b32 v14, v14, v11
    """)
    for T in range(2):
        for b in range(2):
            a(f"v_xor_b32 v15, {(4*T) ^ (2*b)}, v14")
            a(f"v_lshl_add_u32 v{VA+2*T+b}, v15, 4, v13")
            if b: a(f"v_add_u32 v{VA+2*T+b}, {8*128}, v{VA+2*T+b}")
    for i in range(64):
        a(f"v_mov_b32 v{O+i}, 0")
    assert RING == 16
    a("s_sub_u32 s12, s11, 70")
    a("s_barrier")
    for kk in range(4): a(rdK(0, 0, kk))
    a("s_waitcnt vmcnt(0) lgkmcnt(0)")
    rd = reads(0)
    for k in range(4):
        a(qk(0, 0, k)); a(rd[k])
    for k in range(4):
        a(qk(1, 0, k)); a(rd[4+2*k]); a(rd[5+2*k])
    if BR == 1: a("s_barrier")
    for op in gap_valu(7)[:2]: a(op)
    for g in range(8, 16):
        for op in gap_valu(g): a(op)
    a("s_waitcnt lgkmcnt(0)")
    stamp(a, 72)
    a("s_branch K2_R1")
    a.raw(".p2align 6")
    a.label("K2_R0")
    for p in range(RING):
        if p == 1: a.label("K2_R1")
        round_body(a, p, f"K2_E{p&1}")
    a("s_branch K2_R0")
    for par in range(2):
        a.label(f"K2_E{par}")
        a("s_waitcnt lgkmcnt(0)")
        for op in gap_valu(15): a(op)
        vb = par
        for g in range(8):
            if g % 2 == 0: a(pv(0, vb, g // 2))
            for op in (gap_valu(g) if g < 7 else gap_valu(g)[2:]): a(op)
        for j in range(4): a(pv(1, vb, j))
        if par == 0: a("s_branch K2_EPI")
    a.label("K2_EPI")
    stamp(a, 74)
    a(f"""
    s_mul_i32 s20, s9, 392
    s_add_u32 s20, s20, s13
    s_lshl_b32 s20, s20, 12
    s_add_u32 s21, s20, 0x1000
    s_mul_i32 s22, s9, {QROWS*4}
    s_lshl_b32 s23, s13, 7
    s_add_u32 s22, s22, s23
    """)
    srd(a, 16, 4, 5, PO, 5*392*4096)
    srd(a, 24, 4, 5, PL, 5*QROWS*4)
    a("v_and_b32 v11, 31, v0")
    a("v_lshlrev_b32 v11, 2, v11")
    a("s_nop 7")
    for X in range(2):
        for T in range(2):
            for i in range(8):
                a(f"v_cvt_pk_bf16_f32 v{S+16*X+8*T+i}, v{O+32*X+16*T+2*i}, v{O+32*X+16*T+2*i+1}")
            for rho in range(2):
                a(f"buffer_store_dwordx4 {vr(S+16*X+8*T+4*rho,4)}, v10, s[16:19], s{20+X} offen offset:{(2*T+rho)*1024}")
    a("s_mov_b32 exec_lo, 0")
    for X in range(2):
        a(f"buffer_store_dword v{O+32*X+31}, v11, s[24:27], s22 offen offset:{X*128}")
    diag_store(a)
    a("s_endpgm")

VDMA = 2; VCNT = 3; VSEG = 4; VLP = 5; VLP1 = 6; VHL = 7; VDI = 8
VTWO = 10; VT = 11
IDX = 16
A16 = 24
A32 = 28
RK = 36
AD = 44
VNB = 54
VLA = 52
EN = 56
DS_ = 104
NSET = DEPTH + 1

class VM:
    def __init__(self): self.q = []; self.tile = 0
    def issue(self, tag): self.q.append(tag)
    def after(self, tag):
        i = len(self.q) - 1 - self.q[::-1].index(tag)
        return len(self.q) - 1 - i
    def copy(self):
        v = VM(); v.q = list(self.q); v.tile = self.tile; return v

def dma(a, vm=None):
    a(f"""
    s_and_b32 s41, s14, {hex(RING*4096-1)}
    s_add_u32 m0, s41, s15
    s_nop 0
    buffer_load_dwordx4 v{VDMA}, s[16:19], s14 offen lds
    s_add_u32 s14, s14, 0x1000
    """)
    if vm is not None:
        vm.issue(("t", vm.tile)); vm.tile += 1
def dma_slice(a, vm, r):
    n = 0
    while vm.tile <= r + DD and n < 2:
        dma(a, vm); n += 1
def dyn_end(a, n, label, mid=None):
    a(f"s_cmp_lg_u32 s12, s70")
    if mid: mid()
    a(f"s_cbranch_scc1 {label}")
    if n is not None: a(f"s_waitcnt vmcnt({min(n, 63)})")
    a("s_barrier")
    a(f"s_add_u32 s70, s70, {BR}")
    a(f"s_cmp_ge_u32 s70, s11")
    a(f"s_cselect_b32 s70, -1, s70")
    a.label(label)
    a("s_add_u32 s12, s12, 1")

def flush1(a, i):
    a(f"v_add_u32_sdwa v{A32+2*i}, v{A16+i}, v{A32+2*i} dst_sel:DWORD dst_unused:UNUSED_PAD src0_sel:WORD_0 src1_sel:DWORD")
    a(f"v_add_u32_sdwa v{A32+2*i+1}, v{A16+i}, v{A32+2*i+1} dst_sel:DWORD dst_unused:UNUSED_PAD src0_sel:WORD_1 src1_sel:DWORD")
def finalize(a, rho, from_int=True):
    if from_int:
        for i in range(4): flush1(a, i)
        for i in range(8):
            a(f"v_cvt_f32_i32 v{A32+i}, v{A32+i}")
    for i in range(8):
        a(f"v_mul_f32 v{A32+i}, v{A32+i}, v{VDI+rho}")
    for i in range(4):
        a(f"v_cvt_pk_bf16_f32 v{VT+1+i}, v{A32+2*i}, v{A32+2*i+1}")
    a(f"buffer_store_dwordx4 {vr(VT+1,4)}, v{VHL}, s[28:31], {'s42' if rho else '0'} offen")
    if from_int and rho == 0:
        for i in range(8):
            a(f"v_mov_b32 v{A32+i}, v{VNB}")
        for i in range(4):
            a(f"v_mov_b32 v{A16+i}, 0")

def gen_aux(a):
    vm = VM()
    a.label("K2_AUX")
    a(f"""
    s_setprio {int(os.environ.get("PRIO_X", "3"))}
    s_sub_u32 s13, s3, 4
    s_lshl_b32 s15, s13, 10
    v_and_b32 v1, 63, v0
    v_lshlrev_b32 v{VDMA}, 4, v1
    v_add_u32 v{VDMA}, s15, v{VDMA}
    s_lshl_b32 s41, s10, 12
    s_add_u32 s41, s41, {hex(HI)}
    s_lshl_b32 s42, s11, 12
    s_mov_b32 s14, 0
    s_mov_b32 s40, 0
    v_subrev_u32 v{VT}, 256, v0           ; ta
    s_mov_b32 s43, {CHUNK_B}
    v_mul_lo_u32 v{VSEG}, v{VT}, s43
    s_lshl_b32 s43, s64, 2
    s_waitcnt lgkmcnt(0)
    """)
    srd(a, 16, 4, 5, "s41", "s42")
    dma(a, vm); dma(a, vm)
    srd(a, 20, 4, 5, BINS, NCHUNK*CHUNK_B)
    a(f"buffer_load_dword v{VCNT}, v{VSEG}, s[20:23], s43 offen"); vm.issue("desc")
    for i in range(max(2, BR - 1)): dma(a, vm)
    srd(a, 24, 4, 5, T16, N, stride=128)
    a(f"s_lshl_b32 s41, s64, 13")
    a(f"s_add_u32 s41, s41, {hex(HL)}")
    srd(a, 28, 4, 5, "s41", 8192)
    srd(a, 32, 6, 7, 0, N*2)
    a(f"""
    v_mov_b32 v{VT+1}, -1
    v_mov_b32 v{VT+2}, -1
    v_mov_b32 v{VT+3}, -1
    v_mov_b32 v{VT+4}, -1
    v_lshlrev_b32 v{VT}, 4, v{VT}
    v_add_u32 v{VT}, {LB}, v{VT}
    """)
    for i in range(5):
        a(f"ds_write_b128 v{VT}, {vr(VT+1,4)} offset:{4096*i}")
    a(f"""
    v_mul_u32_u24 v{VT+1}, {LSTR}, v1
    v_add_u32 v{VT+1}, {LB}, v{VT+1}
    v_lshlrev_b32 v{VLA}, 2, v1
    v_add_u32 v{VLA}, {CNT}, v{VLA}
    ds_write_b32 v{VLA}, v{VT+1}
    v_mov_b32 v{VTWO}, 2
    v_mov_b32 v{VLA+1}, {CNT}
    v_lshrrev_b32 v{VT}, 3, v1            ; g
    s_lshl_b32 s41, s13, 3
    v_add_u32 v{VT}, s41, v{VT}
    v_mul_u32_u24 v{VLP}, {LSTR}, v{VT}
    v_add_u32 v{VLP}, {LB}, v{VLP}
    v_add_u32 v{VLP1}, {32*LSTR}, v{VLP}
    v_and_b32 v{VT+1}, 7, v1
    v_lshlrev_b32 v{VT+1}, 4, v{VT+1}     ; c*16
    v_lshl_add_u32 v{VHL}, v{VT}, 7, v{VT+1}
    s_lshl_b32 s41, s64, 6
    v_add_lshl_u32 v{VDI+1}, s41, v{VT}, 1
    """)
    for k in range(G):
        a(f"v_mov_b32 v{IDX+2*k+1}, v{VT+1}")
    for i in range(12): a(f"v_mov_b32 v{A16+i}, 0")
    for i in range(4*G, 4*G*NSET): a(f"v_mov_b32 v{DS_+i}, 0")
    a(f"""
    s_movk_i32 s42, 0x1000
    s_waitcnt vmcnt({vm.after(("t", BR))}) lgkmcnt(0)
    s_barrier
    s_cmp_ge_u32 s64, {NBIN}
    s_cbranch_scc1 K2_IDLE0
    """)
    vm_idle = vm.copy()
    r = 0
    def end(extra=0):
        nonlocal r
        if r % BR == BR - 1:
            a(f"s_waitcnt vmcnt({min(63, vm.after(('t', r + BR + 1 + extra)))})")
            a("s_barrier")
        r += 1
    def to_dynamic():
        a(f"s_mov_b32 s12, {r}")
        a(f"s_mov_b32 s70, {r + (BR - 1 - r) % BR}")
    dma_slice(a, vm, r)
    a(f"buffer_load_ushort v{VDI}, v{VDI+1}, s[32:35], 0 offen"); vm.issue("deg")
    a(f"buffer_load_ushort v{VDI+1}, v{VDI+1}, s[32:35], 0 offen offset:64"); vm.issue("deg")
    end()
    for part in range(3):
        dma_slice(a, vm, r)
        if part == 0:
            a(f"""
            v_and_b32 v{VT}, 0xffff, v{VCNT}
            v_lshl_add_u32 v{VSEG}, v{VT}, 2, v{VSEG}
            v_lshrrev_b32 v{VCNT}, 16, v{VCNT}
            """)
        for k in range(4*part, 4*part + 4):
            if k >= 2:
                a(f"v_cmp_lt_u32 vcc, {4*k}, v{VCNT}")
                a(f"s_or_b64 exec, vcc, 1")
            a(f"buffer_load_dwordx4 {vr(EN+4*k,4)}, v{VSEG}, s[20:23], 0 offen offset:{1024+16*k}"); vm.issue(("seg", part))
        a("s_mov_b64 exec, -1")
        if part == 0:
            a(f"""
            v_cmp_lt_u32 vcc, 48, v{VCNT}
            s_and_saveexec_b64 s[48:49], vcc
            v_mov_b32 v{VT+1}, 0x10000
            ds_add_u32 v{VLA+1}, v{VT+1}
            s_mov_b64 exec, -1
            """)
        end()
    a("s_mov_b64 s[62:63], -1")
    for sl in range(6):
        dma_slice(a, vm, r)
        if sl % 2 == 0: a(f"s_waitcnt vmcnt({vm.after(('seg', sl // 2))})")
        a(f"s_cmp_eq_u64 s[62:63], 0")
        a(f"s_cbranch_scc1 K2_INS{sl}")
        a("s_mov_b64 exec, s[62:63]")
        for j in range(8):
            e = sl*8 + j
            a(f"v_cmpx_lt_u32 s[{48+2*j}:{49+2*j}], {e}, v{VCNT}")
            if CNT < 65536:
                a(f"v_bfe_u32 v{AD+j}, v{EN+e}, 16, 8")
                a(f"ds_add_rtn_u32 v{RK+j}, v{AD+j}, v{VTWO} offset:{CNT}")
            else:
                a(f"v_perm_b32 v{AD+j}, v{VLA+1}, v{EN+e}, s65")
                a(f"ds_add_rtn_u32 v{RK+j}, v{AD+j}, v{VTWO}")
        a(f"s_waitcnt lgkmcnt(0)")
        for j in range(8):
            e = sl*8 + j
            a(f"s_mov_b64 exec, s[{48+2*j}:{49+2*j}]")
            a(f"v_min_u32 v{RK+j}, {LB+64*LSTR}, v{RK+j}")
            a(f"ds_write_b16 v{RK+j}, v{EN+e}")
        a("s_mov_b64 exec, -1")
        a.label(f"K2_INS{sl}")
        a("s_waitcnt lgkmcnt(0)")
        end()
    while r % BR:
        dma_slice(a, vm, r); end()
    dma_slice(a, vm, r)
    a(f"""
    ds_read_b32 v{VT}, v{VLA}
    v_lshrrev_b32 v{VT+2}, 3, v1
    s_lshl_b32 s41, s13, 5
    s_add_u32 s41, s41, {CNT}
    v_lshl_add_u32 v{VT+2}, v{VT+2}, 2, s41
    ds_read_b32 v{VT+3}, v{VT+2}
    ds_read_b32 v{VNB}, v{VT+2} offset:128
    v_mul_u32_u24 v{VT+1}, {LSTR}, v1
    v_lshlrev_b32 v{VDI}, 16, v{VDI}
    v_lshlrev_b32 v{VDI+1}, 16, v{VDI+1}
    v_mul_f32 v{VDI}, {hex(f32bits(1/TSC))}, v{VDI}
    v_mul_f32 v{VDI+1}, {hex(f32bits(1/TSC))}, v{VDI+1}
    """)
    for k in range(G):
        a(f"ds_read_u16 v{IDX+2*k}, v{VLP} offset:{2*k}")
    a(f"""
    s_waitcnt lgkmcnt({G})
    v_sub_u32 v{VT}, v{VT}, v{VT+1}
    v_subrev_u32 v{VT}, {LB}, v{VT}
    v_cmp_lt_u32 vcc, 256, v{VT}
    s_cmp_lg_u64 vcc, 0
    s_cselect_b32 s40, 1, 0
    v_sub_u32 v{VT+3}, v{VLP}, v{VT+3}    ; -2*count
    v_sub_u32 v{VNB}, v{VLP1}, v{VNB}
    v_mul_i32_i24 v{VT+3}, {TBIAS//2}, v{VT+3}
    v_mul_i32_i24 v{VNB}, {TBIAS//2}, v{VNB}
    """)
    for i in range(8): a(f"v_mov_b32 v{A32+i}, v{VT+3}")
    for sh in (1, 2, 4):
        a(f"v_max_u32_dpp v{VT}, v{VT}, v{VT} row_shr:{sh} row_mask:0xf bank_mask:0xf bound_ctrl:0")
    magic = (1 << 16) // (2*G) + 1
    a(f"""
    s_lshl_b32 s41, s13, 3
    s_add_u32 s41, s41, 7
    s_add_u32 s43, s41, 32
    v_readlane_b32 s36, v{VT}, s41
    v_readlane_b32 s37, v{VT}, s43
    s_add_u32 s36, s36, {2*G-1}
    s_mul_i32 s36, s36, {magic}
    s_lshr_b32 s36, s36, 16
    s_max_u32 s36, s36, 1
    s_add_u32 s37, s37, {2*G-1}
    s_mul_i32 s37, s37, {magic}
    s_lshr_b32 s37, s37, 16
    s_max_u32 s37, s37, 1
    s_add_u32 s37, s37, s36
    s_mov_b32 s38, 0
    s_mov_b32 s39, {-DEPTH}
    """)
    assert vm.tile == r + DD + 1, (vm.tile, r)
    assert YOUNG - 1 >= DEPTH - 1
    a(f"s_waitcnt vmcnt({vm.after(('t', min(vm.tile - 1, r + DEPTH + BR + 1)))})")
    end()
    to_dynamic()
    a("s_cmp_lg_u32 s40, 0")
    a("s_cbranch_scc1 K2_IDLE")
    stamp(a, 72)
    a.label("K2_G")
    assert G == 4 and NSET >= 5 and NSET * G <= 20
    for s in range(NSET):
        c = DS_ + 4*G*((s+1) % NSET)
        adds = []
        for h in range(2):
            for i in range(4):
                acc = "0" if (h == 0 and s >= 1 and i == s - 1) else f"v{A16+i}"
                adds.append(f"v_add3_u32 v{A16+i}, v{c+8*h+i}, v{c+8*h+4+i}, {acc}")
        nxt = (s + 1) % NSET
        if os.environ.get("NOADD"): adds = ["s_nop 0"] * 8
        ld = [f"buffer_load_dwordx4 {vr(DS_+4*G*s+4*k,4)}, {vr(IDX+2*k,2)}, s[24:27], 0 idxen offen" for k in range(G)]
        if os.environ.get("NOLD"): ld = ["s_nop 0"] * 4
        rd = [f"ds_read_u16 v{IDX+2*k}, v{VLP} offset:{2*G*nxt+2*k}" for k in range(G)]
        a(f"""
        s_waitcnt vmcnt({(DEPTH-1)*(G+1) if not os.environ.get("NOLD") else 8}) lgkmcnt(0)
        {adds[0]}
        {ld[0]}
        s_and_b32 s41, s14, {hex(RING*4096-1)}
        {adds[1]}
        {ld[1]}
        s_add_u32 m0, s41, s15
        {adds[2]}
        {ld[2]}
        s_add_u32 s38, s38, 1
        {adds[3]}
        {ld[3]}
        s_cmp_lg_u32 s38, s36
        """)
        if nxt == 0: a(f"v_add_u32 v{VLP}, {2*G*NSET}, v{VLP}")
        a(f"""
        s_cbranch_scc1 K2_GA{s}
        v_subrev_u32 v{VLP}, {2*G*nxt}, v{VLP1}
        K2_GA{s}:
        {adds[4]}
        buffer_load_dwordx4 v{VDMA}, s[16:19], s14 offen lds
        s_add_u32 s14, s14, 0x1000
        {adds[5]}
        {rd[0]}
        {rd[1]}
        s_add_u32 s39, s39, 1
        {adds[6]}
        {rd[2]}
        {rd[3]}
        s_cmp_eq_u32 s39, s37
        {adds[7]}
        s_cbranch_scc1 K2_GDONE
        s_cmp_lg_u32 s39, s36
        s_cbranch_scc1 K2_GB{s}
        """)
        finalize(a, 0)
        a.label(f"K2_GB{s}")
        dyn_end(a, None, f"K2_GC{s}", (lambda: flush1(a, s)) if s < 4 and not os.environ.get('NOADD') else None)
    a("s_branch K2_G")
    a.label("K2_GDONE")
    stamp(a, 74)
    finalize(a, 1)
    dyn_end(a, YOUNG, "K2_GCX")
    a("s_branch K2_IDLE")
    a.label("K2_IDLE0")
    vm = vm_idle; r = 0
    while vm.tile < r + DD:
        dma_slice(a, vm, r); end()
    assert vm.tile == r + DD
    to_dynamic()
    a.label("K2_IDLE")
    a("s_cmp_eq_u32 s70, -1")
    a("s_cbranch_scc1 K2_AEND")
    dma(a)
    dyn_end(a, YOUNG, "K2_IC")
    a("s_branch K2_IDLE")
    a.label("K2_AEND")
    diag_store(a)
    a("s_cmp_eq_u32 s40, 0")
    a("s_cbranch_scc1 K2_END")
    gen_slow(a)

def gen_slow(a):
    ACC = LB
    a(f"""
    s_waitcnt vmcnt(0) lgkmcnt(0)
    s_barrier
    v_subrev_u32 v{VT}, 256, v0
    v_lshlrev_b32 v{VT}, 4, v{VT}
    v_add_u32 v{VT}, {ACC}, v{VT}
    v_mov_b32 v{VT+1}, 0
    v_mov_b32 v{VT+2}, 0
    v_mov_b32 v{VT+3}, 0
    v_mov_b32 v{VT+4}, 0
    """)
    for i in range(4):
        a(f"ds_write_b128 v{VT}, {vr(VT+1,4)} offset:{4096*i}")
    a(f"""
    s_waitcnt lgkmcnt(0)
    s_barrier
    s_mov_b32 s44, s13
    v_lshrrev_b32 v{RK}, 3, v1         ; g
    v_and_b32 v{RK+1}, 7, v1
    v_lshlrev_b32 v{RK+1}, 5, v{RK+1}
    v_add_u32 v{RK+1}, {ACC}, v{RK+1}
    K2_S0:
    s_mul_i32 s45, s44, {CHUNK_B}
    s_lshl_b32 s46, s64, 2
    s_add_u32 s46, s46, s45
    v_mov_b32 v{VT}, 0
    buffer_load_dword v{VT+1}, v{VT}, s[20:23], s46 offen
    s_waitcnt vmcnt(0)
    v_readfirstlane_b32 s46, v{VT+1}
    s_lshr_b32 s47, s46, 16            ; count
    s_and_b32 s46, s46, 0xffff
    s_lshl_b32 s46, s46, 2
    s_add_u32 s45, s45, s46
    v_mov_b32 v{RK+2}, v{RK}
    K2_S1:
    v_cmp_gt_u32 vcc, s47, v{RK+2}
    s_and_saveexec_b64 s[48:49], vcc
    s_cbranch_execz K2_S2
    v_lshlrev_b32 v{VT}, 2, v{RK+2}
    buffer_load_dword v{VT+1}, v{VT}, s[20:23], s45 offen offset:1024
    s_waitcnt vmcnt(0)
    v_and_b32 v{IDX}, 0xffff, v{VT+1}
    buffer_load_dwordx4 {vr(DS_,4)}, {vr(IDX,2)}, s[24:27], 0 idxen offen
    v_bfe_u32 v{VT}, v{VT+1}, 18, 6
    v_lshl_add_u32 v{VT}, v{VT}, 8, v{RK+1}
    s_waitcnt vmcnt(0)
    """)
    for i in range(4):
        a(f"v_cvt_f32_u32_sdwa v{A32+2*i}, v{DS_+i} dst_sel:DWORD dst_unused:UNUSED_PAD src0_sel:WORD_0")
        a(f"v_cvt_f32_u32_sdwa v{A32+2*i+1}, v{DS_+i} dst_sel:DWORD dst_unused:UNUSED_PAD src0_sel:WORD_1")
    for i in range(8):
        a(f"v_subrev_f32 v{A32+i}, {hex(f32bits(float(TBIAS)))}, v{A32+i}")
    for i in range(8):
        a(f"ds_add_f32 v{VT}, v{A32+i} offset:{4*i}")
    a(f"""
    s_mov_b64 exec, -1
    v_add_u32 v{RK+2}, 8, v{RK+2}
    s_branch K2_S1
    K2_S2:
    s_mov_b64 exec, -1
    s_add_u32 s44, s44, 4
    s_cmp_lt_u32 s44, {NCHUNK}
    s_cbranch_scc1 K2_S0
    s_waitcnt lgkmcnt(0)
    s_barrier
    v_lshlrev_b32 v{VT}, 1, v{VHL}      ; local*256 + c*32
    v_add_u32 v{VT}, {ACC}, v{VT}
    """)
    for rho in range(2):
        a(f"ds_read_b128 {vr(A32,4)}, v{VT} offset:{8192*rho}")
        a(f"ds_read_b128 {vr(A32+4,4)}, v{VT} offset:{8192*rho+16}")
        a("s_waitcnt lgkmcnt(0)")
        finalize(a, rho, from_int=False)

def gen_k2(a):
    header(a, "attn_kernel")
    a(f"""
    s_cmp_ge_u32 s2, {K2_GRID}
    s_cbranch_scc1 K2_END
    s_load_dwordx2 s[4:5], s[0:1], 88
    s_load_dwordx2 s[6:7], s[0:1], 24
    """)
    if DIAG:
        a("s_memrealtime s[68:69]")
        stamp(a, 90)
        a("s_mov_b32 s72, 0")
        a("s_mov_b32 s74, 0")
    a(f"""
    v_lshrrev_b32 v1, 6, v0
    s_and_b32 s66, s2, 7
    s_lshr_b32 s67, s2, 3               ; j
    """)
    if os.environ.get("BADMAP"):
        a("s_add_u32 s66, s66, s67")
        a("s_cmp_ge_u32 s2, 240")
        a("s_cselect_b32 s71, 0, s67")
        a("s_and_b32 s66, s2, 7")
        a("s_add_u32 s66, s66, s71")
        a("s_and_b32 s66, s66, 7")
    a(f"""
    v_readfirstlane_b32 s3, v1
    s_mul_i32 s8, s67, 52
    s_lshr_b32 s8, s8, 8                ; j / 5
    s_mul_i32 s9, s8, 5
    s_sub_u32 s9, s67, s9               ; split = j % 5
    s_lshl_b32 s8, s8, 3
    s_add_u32 s8, s8, s66               ; q block
    s_mul_i32 s64, s66, 25
    s_add_u32 s64, s64, s67
    s_cmp_lt_u32 s67, 25
    s_cselect_b32 s64, s64, 255
    s_cmp_ge_u32 s2, 240
    s_cselect_b32 s8, 48, s8
    s_cselect_b32 s9, s66, s9
    s_mov_b32 s65, 0x0c060c02
    s_mul_i32 s10, s9, 78
    s_cmp_lg_u32 s9, 0
    s_addc_u32 s10, s10, 0
    s_mov_b32 s11, 78
    s_cmp_eq_u32 s9, 0
    s_addc_u32 s11, s11, 0
    s_cmp_ge_u32 s3, 4
    s_cbranch_scc1 K2_AUX
    """)
    gen_attention(a)
    gen_aux(a)
    a.label("K2_END")
    a("s_endpgm")
    return kd("attn_kernel", max(224, DS_ + 4*G*NSET))
```

```python
from common import *
import os
E = lambda k, d: int(os.environ.get(k, d))
DIAG = int(os.environ.get("DIAG", "0"))
DIAGOFF = 0x1800000
def stamp(a, reg):
    if DIAG:
        a(f"s_memtime s[{reg}:{reg+1}]")
        a("s_waitcnt lgkmcnt(0)")
def diag_store(a):
    if not DIAG: return
    a("s_mov_b64 exec, -1")
    stamp(a, 76)
    a("s_memrealtime s[78:79]")
    a("s_getreg_b32 s80, hwreg(HW_REG_HW_ID)")
    a("s_getreg_b32 s81, hwreg(HW_REG_XCC_ID)")
    a("s_waitcnt lgkmcnt(0)")
    srd(a, 84, 4, 5, DIAGOFF, 0x100000)
    a("s_lshl_b32 s82, s2, 3")
    a("s_add_u32 s82, s82, s3")
    a("s_lshl_b32 s82, s82, 5")
    for i, r in enumerate([80, 81, 90, 72, 74, 76, 68, 78]):
        a(f"v_mov_b32 v{200+i}, s{r}")
    a("v_mov_b32 v208, 0")
    a("buffer_store_dwordx4 v[200:203], v208, s[84:87], s82 offen")
    a("buffer_store_dwordx4 v[204:207], v208, s[84:87], s82 offen offset:16")
K2_GRID = 245
RING = 16
G = 4
DEPTH = 4
BR = 4
DD = RING - 1 - BR
YOUNG = RING - 2 - 2*BR
NA = E("NA", "77")
NB = NT32 - 4*NA
CNT = RING * 4096
LB = CNT + 512
LSTR = 264
K2_LDS = LB + 20480

KA = 2
VA = 6
O = 16
Q = 80
S = 112
P = 144
KF = 160
VF = 192
def rO(X, T): return vr(O + 32*X + 16*T, 16)
def rQ(X, kk): return vr(Q + 16*X + 4*kk, 4)
def rS(X): return vr(S + 16*X, 16)
def rP(X, u): return vr(P + 8*X + 4*u, 4)
def rK(b, kk): return vr(KF + 16*b + 4*kk, 4)
def rV(b, u, T): return vr(VF + 16*b + 8*u + 4*T, 4)

def qk(X, kb, kk):
    c = "0" if kk == 0 else rS(X)
    return f"v_mfma_f32_32x32x16_bf16 {rS(X)}, {rK(kb,kk)}, {rQ(X,kk)}, {c}"
def pv(X, vb, j):
    u, T = j >> 1, j & 1
    return f"v_mfma_f32_32x32x16_bf16 {rO(X,T)}, {rV(vb,u,T)}, {rP(X,u)}, {rO(X,T)}"
def rdK(slot, kb, kk):
    return f"ds_read_b128 {rK(kb,kk)}, v{KA+kk} offset:{slot*4096}"
def rdV(slot, vb, u, T, b):
    d = VF + 16*vb + 8*u + 4*T + 2*b
    return f"ds_read_b64_tr_b16 {vr(d,2)}, v{VA+2*T+b} offset:{slot*4096 + u*2048}"
def ex(X, e): return f"v_exp_f32 v{S+16*X+e}, v{S+16*X+e}"
def cv(X, j): return f"v_cvt_pk_bf16_f32 v{P+8*X+j}, v{S+16*X+2*j}, v{S+16*X+2*j+1}"
def gap_valu(g):
    n = (g + 1) % 16
    Xn, jn = (1 if n < 8 else 0), n & 7
    X, j = (1 if g < 8 else 0), g & 7
    return [ex(Xn, 2*jn), ex(Xn, 2*jn+1), cv(X, j)]
def reads(p):
    r = [rdK((p+1) % RING, (p+1) & 1, kk) for kk in range(4)]
    r += [rdV(p % RING, p & 1, u, T, b) for u in range(2) for T in range(2) for b in range(2)]
    return r

CHECK = sorted({(NA - 1) % RING, (NB - 1) % RING})
def checks_before(n): return sum(1 for r in range(1, n - 1) if r % RING in CHECK)
def round_body(a, p, exit_label):
    kb = p & 1; vb = (p+1) & 1
    mf = [qk(0, kb, k) for k in range(4)] + [pv(0, vb, j) for j in range(4)] + \
         [qk(1, kb, k) for k in range(4)] + [pv(1, vb, j) for j in range(4)]
    rd = reads(p)
    nv = rd[:3] + ["s_waitcnt lgkmcnt(3)"] + rd[3:]
    nv += ["s_barrier" if p % BR == BR - 1 else ""]
    if p in CHECK:
        nv += ["s_sub_u32 s12, s12, 1\ns_waitcnt lgkmcnt(8)", f"s_cbranch_scc1 {exit_label}"]
    else:
        nv += ["s_waitcnt lgkmcnt(8)", ""]
    for g in range(16):
        a(mf[g]); a(nv[g])
        for op in gap_valu(g): a(op)

def gen_attention(a):
    a(f"""
    s_setprio {int(os.environ.get("PRIO_A", "0"))}
    v_and_b32 v1, 63, v0
    v_lshlrev_b32 v10, 4, v1
    s_lshl_b32 s13, s8, 3
    s_lshl_b32 s14, s3, 1
    s_add_u32 s13, s13, s14
    s_lshl_b32 s14, s13, 12
    s_add_u32 s15, s14, 0x1000
    s_waitcnt lgkmcnt(0)
    """)
    srd(a, 16, 4, 5, QF, NT32*4096)
    for X in range(2):
        for kk in range(4):
            a(f"buffer_load_dwordx4 {rQ(X,kk)}, v10, s[16:19], s{14+X} offen offset:{kk*1024}")
    a(f"""
    v_and_b32 v11, 31, v0            ; row i
    v_lshrrev_b32 v12, 5, v1         ; hi
    v_bfe_u32 v13, v11, 1, 1
    v_lshlrev_b32 v13, 2, v13
    v_bfe_u32 v14, v11, 2, 2
    v_or_b32 v13, v13, v14           ; f(i)
    v_xor_b32 v13, v13, v12          ; hi ^ f
    v_lshlrev_b32 v11, 7, v11
    """)
    for kk in range(4):
        a(f"v_xor_b32 v14, {2*kk}, v13")
        a(f"v_lshl_add_u32 v{KA+kk}, v14, 4, v11")
    a(f"""
    v_bfe_u32 v11, v0, 2, 2          ; rr
    v_lshl_add_u32 v13, v12, 2, v11  ; 4hi+rr
    v_lshlrev_b32 v13, 7, v13
    v_and_b32 v14, 1, v0
    v_lshl_add_u32 v13, v14, 3, v13  ; + (c4&1)*8
    v_bfe_u32 v14, v0, 4, 1
    v_lshlrev_b32 v14, 1, v14
    v_bfe_u32 v15, v0, 1, 1
    v_or_b32 v14, v14, v15           ; 2x + (c4>>1)
    v_lshrrev_b32 v11, 1, v11
    v_lshl_or_b32 v11, v11, 2, v12
    v_xor_b32 v14, v14, v11
    """)
    for T in range(2):
        for b in range(2):
            a(f"v_xor_b32 v15, {(4*T) ^ (2*b)}, v14")
            a(f"v_lshl_add_u32 v{VA+2*T+b}, v15, 4, v13")
            if b: a(f"v_add_u32 v{VA+2*T+b}, {8*128}, v{VA+2*T+b}")
    for i in range(64):
        a(f"v_mov_b32 v{O+i}, 0")
    a("s_cmp_eq_u32 s9, 4")
    a(f"s_cselect_b32 s12, {checks_before(NB)}, {checks_before(NA)}")
    a("s_barrier")
    for kk in range(4): a(rdK(0, 0, kk))
    a("s_waitcnt vmcnt(0) lgkmcnt(0)")
    rd = reads(0)
    for k in range(4):
        a(qk(0, 0, k)); a(rd[k])
    for k in range(4):
        a(qk(1, 0, k)); a(rd[4+2*k]); a(rd[5+2*k])
    if BR == 1: a("s_barrier")
    for op in gap_valu(7)[:2]: a(op)
    for g in range(8, 16):
        for op in gap_valu(g): a(op)
    a("s_waitcnt lgkmcnt(0)")
    stamp(a, 72)
    a("s_branch K2_R1")
    a.raw(".p2align 6")
    a.label("K2_R0")
    for p in range(RING):
        if p == 1: a.label("K2_R1")
        round_body(a, p, f"K2_E{p&1}")
    a("s_branch K2_R0")
    for par in range(2):
        a.label(f"K2_E{par}")
        a("s_waitcnt lgkmcnt(0)")
        for op in gap_valu(15): a(op)
        vb = par
        for g in range(8):
            if g % 2 == 0: a(pv(0, vb, g // 2))
            for op in (gap_valu(g) if g < 7 else gap_valu(g)[2:]): a(op)
        for j in range(4): a(pv(1, vb, j))
        if par == 0: a("s_branch K2_EPI")
    a.label("K2_EPI")
    stamp(a, 74)
    a(f"""
    s_mul_i32 s20, s9, 392
    s_add_u32 s20, s20, s13
    s_lshl_b32 s20, s20, 12
    s_add_u32 s21, s20, 0x1000
    s_mul_i32 s22, s9, {QROWS*4}
    s_lshl_b32 s23, s13, 7
    s_add_u32 s22, s22, s23
    """)
    srd(a, 16, 4, 5, PO, 5*392*4096)
    srd(a, 24, 4, 5, PL, 5*QROWS*4)
    a("v_and_b32 v11, 31, v0")
    a("v_lshlrev_b32 v11, 2, v11")
    a("s_nop 7")
    for X in range(2):
        for T in range(2):
            for i in range(8):
                a(f"v_cvt_pk_bf16_f32 v{S+16*X+8*T+i}, v{O+32*X+16*T+2*i}, v{O+32*X+16*T+2*i+1}")
            for rho in range(2):
                a(f"buffer_store_dwordx4 {vr(S+16*X+8*T+4*rho,4)}, v10, s[16:19], s{20+X} offen offset:{(2*T+rho)*1024}")
    a("s_mov_b32 exec_lo, 0")
    for X in range(2):
        a(f"buffer_store_dword v{O+32*X+31}, v11, s[24:27], s22 offen offset:{X*128}")
    diag_store(a)
    a("s_endpgm")

VDMA = 2; VCNT = 3; VSEG = 4; VLP = 5; VLP1 = 6; VHL = 7; VDI = 8
VTWO = 10; VT = 11
IDX = 16
A16 = 24
A32 = 28
RK = 36
AD = 44
VLA = 52
VNB = 54
EN = 56
DS_ = 104
NSET = DEPTH + 1

class VM:
    def __init__(self): self.q = []; self.tile = 0
    def issue(self, tag): self.q.append(tag)
    def after(self, tag):
        i = len(self.q) - 1 - self.q[::-1].index(tag)
        return len(self.q) - 1 - i
    def copy(self):
        v = VM(); v.q = list(self.q); v.tile = self.tile; return v

def dma(a, vm=None):
    a(f"""
    s_and_b32 s41, s14, {hex(RING*4096-1)}
    s_add_u32 m0, s41, s15
    s_nop 0
    buffer_load_dwordx4 v{VDMA}, s[16:19], s14 offen lds
    s_add_u32 s14, s14, 0x1000
    """)
    if vm is not None:
        vm.issue(("t", vm.tile)); vm.tile += 1
def dma_slice(a, vm, r):
    n = 0
    while vm.tile <= r + DD and n < 2:
        dma(a, vm); n += 1
def dyn_end(a, n, label, mid=None):
    a(f"s_cmp_lg_u32 s12, s70")
    if mid: mid()
    a(f"s_cbranch_scc1 {label}")
    if n is not None: a(f"s_waitcnt vmcnt({min(n, 63)})")
    a("s_barrier")
    a(f"s_add_u32 s70, s70, {BR}")
    a(f"s_cmp_ge_u32 s70, s11")
    a(f"s_cselect_b32 s70, -1, s70")
    a.label(label)
    a("s_add_u32 s12, s12, 1")

def flush1(a, i):
    a(f"v_add_u32_sdwa v{A32+2*i}, v{A16+i}, v{A32+2*i} dst_sel:DWORD dst_unused:UNUSED_PAD src0_sel:WORD_0 src1_sel:DWORD")
    a(f"v_add_u32_sdwa v{A32+2*i+1}, v{A16+i}, v{A32+2*i+1} dst_sel:DWORD dst_unused:UNUSED_PAD src0_sel:WORD_1 src1_sel:DWORD")
def finalize(a, rho, from_int=True):
    if from_int:
        for i in range(4): flush1(a, i)
        for i in range(8):
            a(f"v_cvt_f32_i32 v{A32+i}, v{A32+i}")
    for i in range(8):
        a(f"v_mul_f32 v{A32+i}, v{A32+i}, v{VDI+rho}")
    for i in range(4):
        a(f"v_cvt_pk_bf16_f32 v{VT+1+i}, v{A32+2*i}, v{A32+2*i+1}")
    a(f"buffer_store_dwordx4 {vr(VT+1,4)}, v{VHL}, s[28:31], {'s42' if rho else '0'} offen")
    if from_int and rho == 0:
        for i in range(8):
            a(f"v_mov_b32 v{A32+i}, v{VNB}")
        for i in range(4):
            a(f"v_mov_b32 v{A16+i}, 0")

def gen_aux(a):
    vm = VM()
    a.label("K2_AUX")
    a(f"""
    s_setprio {E("PRIO_X", "3")}
    s_sub_u32 s13, s3, 4
    s_lshl_b32 s15, s13, 10
    v_and_b32 v1, 63, v0
    v_lshlrev_b32 v{VDMA}, 4, v1
    v_add_u32 v{VDMA}, s15, v{VDMA}
    s_lshl_b32 s41, s10, 12
    s_add_u32 s41, s41, {hex(HI)}
    s_lshl_b32 s42, s11, 12
    s_mov_b32 s14, 0
    s_mov_b32 s40, 0
    v_subrev_u32 v{VT}, 256, v0           ; ta
    s_mov_b32 s43, {CHUNK_B}
    v_mul_lo_u32 v{VSEG}, v{VT}, s43
    s_lshl_b32 s43, s64, 2
    s_waitcnt lgkmcnt(0)
    """)
    srd(a, 16, 4, 5, "s41", "s42")
    for i in range(BR + 1): dma(a, vm)
    vm_idle = vm.copy()
    a(f"s_cmp_ge_u32 s64, {NBIN}")
    a(f"s_cbranch_scc1 K2_IDLE0")
    srd(a, 20, 4, 5, BINS, NCHUNK*CHUNK_B)
    a(f"buffer_load_dword v{VCNT}, v{VSEG}, s[20:23], s43 offen"); vm.issue("desc")
    srd(a, 24, 4, 5, T16, N, stride=128)
    a(f"s_lshl_b32 s41, s64, 13")
    a(f"s_add_u32 s41, s41, {hex(HL)}")
    srd(a, 28, 4, 5, "s41", 8192)
    srd(a, 32, 6, 7, 0, N*2)
    a(f"""
    v_mov_b32 v{VT+1}, -1
    v_mov_b32 v{VT+2}, -1
    v_mov_b32 v{VT+3}, -1
    v_mov_b32 v{VT+4}, -1
    v_lshlrev_b32 v{VT}, 4, v{VT}
    v_add_u32 v{VT}, {LB}, v{VT}
    """)
    for i in range(5):
        a(f"ds_write_b128 v{VT}, {vr(VT+1,4)} offset:{4096*i}")
    a(f"""
    v_mul_u32_u24 v{VT+1}, {LSTR}, v1
    v_add_u32 v{VT+1}, {LB}, v{VT+1}
    v_lshlrev_b32 v{VLA}, 2, v1
    v_add_u32 v{VLA}, {CNT}, v{VLA}
    ds_write_b32 v{VLA}, v{VT+1}
    v_mov_b32 v{VTWO}, 2
    v_mov_b32 v{VLA+1}, {CNT}
    v_lshrrev_b32 v{VT}, 3, v1            ; g
    s_lshl_b32 s41, s13, 3
    v_add_u32 v{VT}, s41, v{VT}
    v_mul_u32_u24 v{VLP}, {LSTR}, v{VT}
    v_add_u32 v{VLP}, {LB}, v{VLP}
    v_add_u32 v{VLP1}, {32*LSTR}, v{VLP}
    v_and_b32 v{VT+1}, 7, v1
    v_lshlrev_b32 v{VT+1}, 4, v{VT+1}     ; c*16
    v_lshl_add_u32 v{VHL}, v{VT}, 7, v{VT+1}
    s_lshl_b32 s41, s64, 6
    v_add_lshl_u32 v{VDI+1}, s41, v{VT}, 1
    buffer_load_ushort v{VDI}, v{VDI+1}, s[32:35], 0 offen
    buffer_load_ushort v{VDI+1}, v{VDI+1}, s[32:35], 0 offen offset:64
    """)
    vm.issue("deg"); vm.issue("deg")
    for k in range(G):
        a(f"v_mov_b32 v{IDX+2*k+1}, v{VT+1}")
    for i in range(4): a(f"v_mov_b32 v{A16+i}, 0")
    for i in range(4*G, 4*G*NSET): a(f"v_mov_b32 v{DS_+i}, 0")
    a(f"""
    s_movk_i32 s42, 0x1000
    s_mov_b32 s65, 0x0c060c02
    s_waitcnt vmcnt({vm.after(("t", BR))}) lgkmcnt(0)
    s_barrier
    """)
    r = 0
    def super_dma():
        for k in range(BR): dma_slice(a, vm, r + k)
    def super_end():
        nonlocal r
        r += BR
        a(f"s_waitcnt vmcnt({min(63, vm.after(('t', r + BR)))})")
        a("s_barrier")
    def to_dynamic():
        a(f"s_mov_b32 s12, {r}")
        a(f"s_mov_b32 s70, {r + (BR - 1 - r) % BR}")
    super_dma()
    a(f"""
    s_waitcnt vmcnt({vm.after("desc")})
    v_and_b32 v{VT}, 0xffff, v{VCNT}
    v_lshl_add_u32 v{VSEG}, v{VT}, 2, v{VSEG}
    v_lshrrev_b32 v{VCNT}, 16, v{VCNT}
    """)
    for k in range(12):
        if k >= 2:
            a(f"v_cmp_lt_u32 vcc, {4*k}, v{VCNT}")
            a(f"s_or_b64 exec, vcc, 1")
        a(f"buffer_load_dwordx4 {vr(EN+4*k,4)}, v{VSEG}, s[20:23], 0 offen offset:{1024+16*k}"); vm.issue(("seg", k))
    a(f"""
    s_mov_b64 exec, -1
    v_cmp_lt_u32 vcc, 48, v{VCNT}
    s_and_saveexec_b64 s[48:49], vcc
    v_mov_b32 v{VT+1}, 0x10000
    ds_add_u32 v{VLA+1}, v{VT+1}
    s_mov_b64 exec, -1
    s_mov_b64 s[62:63], -1
    """)
    super_end()
    PER = E("INS", "12")
    for sl in range(48 // PER):
        super_dma()
        a(f"s_waitcnt vmcnt({vm.after(('seg', (sl*PER + PER - 1) // 4))})")
        a("s_mov_b64 exec, s[62:63]")
        for j in range(PER):
            e = sl*PER + j
            a(f"v_cmpx_lt_u32 s[62:63], {e}, v{VCNT}")
            if j % 2 == 0: a(f"s_cbranch_execz K2_INS{sl}")
            a(f"v_perm_b32 v{AD}, v{VLA+1}, v{EN+e}, s65")
            a(f"ds_add_rtn_u32 v{RK}, v{AD}, v{VTWO}")
            a(f"s_waitcnt lgkmcnt(0)")
            a(f"v_min_u32 v{RK}, {LB+64*LSTR}, v{RK}")
            a(f"ds_write_b16 v{RK}, v{EN+e}")
        a.label(f"K2_INS{sl}")
        a("s_mov_b64 exec, -1")
        a("s_waitcnt lgkmcnt(0)")
        super_end()
    dma_slice(a, vm, r)
    a(f"""
    ds_read_b32 v{VT}, v{VLA}
    v_lshrrev_b32 v{VT+2}, 3, v1
    s_lshl_b32 s41, s13, 5
    s_add_u32 s41, s41, {CNT}
    v_lshl_add_u32 v{VT+2}, v{VT+2}, 2, s41
    ds_read_b32 v{VT+3}, v{VT+2}
    ds_read_b32 v{VNB}, v{VT+2} offset:128
    ds_read_u16 v{IDX}, v{VLP}
    v_mul_u32_u24 v{VT+1}, {LSTR}, v1
    v_lshlrev_b32 v{VDI}, 16, v{VDI}
    v_lshlrev_b32 v{VDI+1}, 16, v{VDI+1}
    v_mul_f32 v{VDI}, {hex(f32bits(1/TSC))}, v{VDI}
    v_mul_f32 v{VDI+1}, {hex(f32bits(1/TSC))}, v{VDI+1}
    s_waitcnt lgkmcnt(1)
    v_sub_u32 v{VT}, v{VT}, v{VT+1}
    v_subrev_u32 v{VT}, {LB}, v{VT}
    v_cmp_lt_u32 vcc, 256, v{VT}
    s_cmp_lg_u64 vcc, 0
    s_cselect_b32 s40, 1, 0
    v_sub_u32 v{VT+3}, v{VLP}, v{VT+3}    ; -2*count
    v_sub_u32 v{VNB}, v{VLP1}, v{VNB}
    v_mul_i32_i24 v{VT+3}, {TBIAS//2}, v{VT+3}
    v_mul_i32_i24 v{VNB}, {TBIAS//2}, v{VNB}
    """)
    for i in range(8): a(f"v_mov_b32 v{A32+i}, v{VT+3}")
    for sh in (1, 2, 4):
        a(f"v_max_u32_dpp v{VT}, v{VT}, v{VT} row_shr:{sh} row_mask:0xf bank_mask:0xf bound_ctrl:0")
    a(f"""
    s_lshl_b32 s41, s13, 3
    s_add_u32 s41, s41, 7
    s_add_u32 s43, s41, 32
    v_readlane_b32 s36, v{VT}, s41
    v_readlane_b32 s37, v{VT}, s43
    s_add_u32 s36, s36, 7
    s_lshr_b32 s36, s36, 3
    s_max_u32 s36, s36, 1
    s_add_u32 s37, s37, 7
    s_lshr_b32 s37, s37, 3
    s_max_u32 s37, s37, 1
    s_add_u32 s37, s37, s36
    s_mov_b32 s38, 0
    s_mov_b32 s39, {-DEPTH}
    """)
    assert vm.tile == r + DD + 1, (vm.tile, r)
    assert YOUNG - 1 >= DEPTH - 1
    a(f"s_waitcnt vmcnt({vm.after(('t', min(vm.tile - 1, r + DEPTH + BR + 1)))})")
    r += 1
    to_dynamic()
    a("s_cmp_lg_u32 s40, 0")
    a("s_cbranch_scc1 K2_IDLE")
    stamp(a, 72)
    a.label("K2_G")
    assert NSET >= 5 and NSET * G <= 20
    for s in range(NSET):
        c = DS_ + 4*G*((s+1) % NSET)
        adds = []
        for h in range(2):
            for i in range(4):
                acc = "0" if (h == 0 and s >= 1 and i == s - 1) else f"v{A16+i}"
                adds.append(f"v_add3_u32 v{A16+i}, v{c+8*h+i}, v{c+8*h+4+i}, {acc}")
        nxt = (s + 1) % NSET
        ld = [f"buffer_load_dwordx4 {vr(DS_+4*G*s+4*k,4)}, {vr(IDX+2*(k&1),2)}, s[24:27], 0 idxen offen" for k in range(G)]
        rd = [f"ds_read_u16 v{IDX+2*((k+1)&1)}, v{VLP} offset:{2*G*s+2*k+2}" for k in range(G-1)]
        rd.append(f"ds_read_u16 v{IDX}, v{VLP} offset:{2*G*nxt}")
        a(f"""
        s_waitcnt vmcnt({(DEPTH-1)*(G+1)}) lgkmcnt(0)
        {rd[0]}
        {adds[0]}
        {ld[0]}
        s_and_b32 s41, s14, {hex(RING*4096-1)}
        s_add_u32 m0, s41, s15
        {adds[1]}
        s_waitcnt lgkmcnt(0)
        {rd[1]}
        {adds[2]}
        {ld[1]}
        s_add_u32 s38, s38, 1
        {adds[3]}
        s_waitcnt lgkmcnt(0)
        {rd[2]}
        {adds[4]}
        {ld[2]}
        s_cmp_lg_u32 s38, s36
        {adds[5]}
        """)
        if nxt == 0: a(f"v_add_u32 v{VLP}, {2*G*NSET}, v{VLP}")
        a(f"""
        s_cbranch_scc1 K2_GA{s}
        v_subrev_u32 v{VLP}, {2*G*nxt}, v{VLP1}
        K2_GA{s}:
        s_waitcnt lgkmcnt(0)
        {rd[3]}
        {adds[6]}
        {ld[3]}
        s_add_u32 s39, s39, 1
        s_cmp_eq_u32 s39, s37
        {adds[7]}
        buffer_load_dwordx4 v{VDMA}, s[16:19], s14 offen lds
        s_add_u32 s14, s14, 0x1000
        s_cmp_eq_u32 s39, s37
        s_cbranch_scc1 K2_GDONE
        s_cmp_lg_u32 s39, s36
        s_cbranch_scc1 K2_GB{s}
        """)
        finalize(a, 0)
        a.label(f"K2_GB{s}")
        dyn_end(a, None, f"K2_GC{s}", (lambda: flush1(a, s)) if s < 4 else None)
    a("s_branch K2_G")
    a.label("K2_GDONE")
    stamp(a, 74)
    finalize(a, 1)
    dyn_end(a, YOUNG, "K2_GCX")
    a("s_branch K2_IDLE")
    a.label("K2_IDLE0")
    vm = vm_idle; r = 0
    a(f"s_waitcnt vmcnt(0)")
    a("s_barrier")
    while vm.tile < r + DD:
        super_dma(); super_end()
    assert vm.tile == r + DD
    to_dynamic()
    a.label("K2_IDLE")
    a("s_cmp_eq_u32 s70, -1")
    a("s_cbranch_scc1 K2_AEND")
    dma(a)
    dyn_end(a, YOUNG, "K2_IC")
    a("s_branch K2_IDLE")
    a.label("K2_AEND")
    diag_store(a)
    a("s_cmp_eq_u32 s40, 0")
    a("s_cbranch_scc1 K2_END")
    gen_slow(a)

def gen_slow(a):
    ACC = LB
    a(f"""
    s_waitcnt vmcnt(0) lgkmcnt(0)
    s_barrier
    v_subrev_u32 v{VT}, 256, v0
    v_lshlrev_b32 v{VT}, 4, v{VT}
    v_add_u32 v{VT}, {ACC}, v{VT}
    v_mov_b32 v{VT+1}, 0
    v_mov_b32 v{VT+2}, 0
    v_mov_b32 v{VT+3}, 0
    v_mov_b32 v{VT+4}, 0
    """)
    for i in range(4):
        a(f"ds_write_b128 v{VT}, {vr(VT+1,4)} offset:{4096*i}")
    a(f"""
    s_waitcnt lgkmcnt(0)
    s_barrier
    s_mov_b32 s44, s13
    v_lshrrev_b32 v{RK}, 3, v1         ; g
    v_and_b32 v{RK+1}, 7, v1
    v_lshlrev_b32 v{RK+1}, 5, v{RK+1}
    v_add_u32 v{RK+1}, {ACC}, v{RK+1}
    K2_S0:
    s_mul_i32 s45, s44, {CHUNK_B}
    s_lshl_b32 s46, s64, 2
    s_add_u32 s46, s46, s45
    v_mov_b32 v{VT}, 0
    buffer_load_dword v{VT+1}, v{VT}, s[20:23], s46 offen
    s_waitcnt vmcnt(0)
    v_readfirstlane_b32 s46, v{VT+1}
    s_lshr_b32 s47, s46, 16            ; count
    s_and_b32 s46, s46, 0xffff
    s_lshl_b32 s46, s46, 2
    s_add_u32 s45, s45, s46
    v_mov_b32 v{RK+2}, v{RK}
    K2_S1:
    v_cmp_gt_u32 vcc, s47, v{RK+2}
    s_and_saveexec_b64 s[48:49], vcc
    s_cbranch_execz K2_S2
    v_lshlrev_b32 v{VT}, 2, v{RK+2}
    buffer_load_dword v{VT+1}, v{VT}, s[20:23], s45 offen offset:1024
    s_waitcnt vmcnt(0)
    v_and_b32 v{IDX}, 0xffff, v{VT+1}
    buffer_load_dwordx4 {vr(DS_,4)}, {vr(IDX,2)}, s[24:27], 0 idxen offen
    v_bfe_u32 v{VT}, v{VT+1}, 18, 6
    v_lshl_add_u32 v{VT}, v{VT}, 8, v{RK+1}
    s_waitcnt vmcnt(0)
    """)
    for i in range(4):
        a(f"v_cvt_f32_u32_sdwa v{A32+2*i}, v{DS_+i} dst_sel:DWORD dst_unused:UNUSED_PAD src0_sel:WORD_0")
        a(f"v_cvt_f32_u32_sdwa v{A32+2*i+1}, v{DS_+i} dst_sel:DWORD dst_unused:UNUSED_PAD src0_sel:WORD_1")
    for i in range(8):
        a(f"v_subrev_f32 v{A32+i}, {hex(f32bits(float(TBIAS)))}, v{A32+i}")
    for i in range(8):
        a(f"ds_add_f32 v{VT}, v{A32+i} offset:{4*i}")
    a(f"""
    s_mov_b64 exec, -1
    v_add_u32 v{RK+2}, 8, v{RK+2}
    s_branch K2_S1
    K2_S2:
    s_mov_b64 exec, -1
    s_add_u32 s44, s44, 4
    s_cmp_lt_u32 s44, {NCHUNK}
    s_cbranch_scc1 K2_S0
    s_waitcnt lgkmcnt(0)
    s_barrier
    v_lshlrev_b32 v{VT}, 1, v{VHL}      ; local*256 + c*32
    v_add_u32 v{VT}, {ACC}, v{VT}
    """)
    for rho in range(2):
        a(f"ds_read_b128 {vr(A32,4)}, v{VT} offset:{8192*rho}")
        a(f"ds_read_b128 {vr(A32+4,4)}, v{VT} offset:{8192*rho+16}")
        a("s_waitcnt lgkmcnt(0)")
        finalize(a, rho, from_int=False)

def gen_k2(a):
    header(a, "attn_kernel")
    a(f"""
    s_cmp_ge_u32 s2, {K2_GRID}
    s_cbranch_scc1 K2_END
    s_load_dwordx2 s[4:5], s[0:1], 88
    s_load_dwordx2 s[6:7], s[0:1], 24
    """)
    if DIAG:
        a("s_memrealtime s[68:69]")
        stamp(a, 90)
        a("s_mov_b32 s72, 0")
        a("s_mov_b32 s74, 0")
    a(f"""
    v_lshrrev_b32 v1, 6, v0
    s_and_b32 s66, s2, 7
    s_lshr_b32 s67, s2, 3               ; j
    v_readfirstlane_b32 s3, v1
    s_mul_i32 s8, s67, 52
    s_lshr_b32 s8, s8, 8                ; j / 5
    s_mul_i32 s9, s8, 5
    s_sub_u32 s9, s67, s9               ; split = j % 5
    s_mul_i32 s64, s66, 24
    s_lshl_b32 s67, s8, 2
    s_add_u32 s64, s64, s67
    s_lshl_b32 s8, s8, 3
    s_add_u32 s8, s8, s66               ; q block
    s_cmp_ge_u32 s2, 240
    s_cselect_b32 s8, 48, s8
    s_cselect_b32 s9, s66, s9
    s_cselect_b32 s64, 192, s64
    s_add_u32 s64, s64, s9
    s_mul_i32 s10, s9, {NA}
    s_cmp_eq_u32 s9, 4
    s_cselect_b32 s64, 255, s64
    s_movk_i32 s11, {NA}
    s_cselect_b32 s11, {NB}, s11
    s_cmp_ge_u32 s3, 4
    s_cbranch_scc1 K2_AUX
    """)
    gen_attention(a)
    gen_aux(a)
    a.label("K2_END")
    a("s_endpgm")
    return kd("attn_kernel", max(224, DS_ + 4*G*NSET))
```

```python
from common import *
import os
E = lambda k, d: int(os.environ.get(k, d))
DIAG = int(os.environ.get("DIAG", "0"))
DIAGOFF = 0x1800000
def stamp(a, reg):
    if DIAG:
        a(f"s_memtime s[{reg}:{reg+1}]")
        a("s_waitcnt lgkmcnt(0)")
def diag_store(a):
    if not DIAG: return
    a("s_mov_b64 exec, -1")
    stamp(a, 76)
    a("s_memrealtime s[78:79]")
    a("s_getreg_b32 s80, hwreg(HW_REG_HW_ID)")
    a("s_getreg_b32 s81, hwreg(HW_REG_XCC_ID)")
    a("s_waitcnt lgkmcnt(0)")
    srd(a, 84, 4, 5, DIAGOFF, 0x100000)
    a("s_lshl_b32 s82, s2, 3")
    a("s_add_u32 s82, s82, s3")
    a("s_lshl_b32 s82, s82, 5")
    for i, r in enumerate([80, 81, 90, 72, 74, 76, 68, 78]):
        a(f"v_mov_b32 v{200+i}, s{r}")
    a("v_mov_b32 v208, 0")
    a("buffer_store_dwordx4 v[200:203], v208, s[84:87], s82 offen")
    a("buffer_store_dwordx4 v[204:207], v208, s[84:87], s82 offen offset:16")
K2_GRID = 245
RING = 16
G = 4
DEPTH = 4
BR = 4
DD = RING - 1 - BR
YOUNG = RING - 2 - 2*BR
NA = E("NA", "77")
NB = NT32 - 4*NA
GFLAG = os.environ.get("GFLAG", "")
DFLAG = os.environ.get("DFLAG", "")
CNT = RING * 4096
LB = CNT + 512
LSTR = 264
K2_LDS = LB + 20480

KA = 2
VA = 6
O = 16
Q = 80
S = 112
P = 144
KF = 160
VF = 192
def rO(X, T): return vr(O + 32*X + 16*T, 16)
def rQ(X, kk): return vr(Q + 16*X + 4*kk, 4)
def rS(X): return vr(S + 16*X, 16)
def rP(X, u): return vr(P + 8*X + 4*u, 4)
def rK(b, kk): return vr(KF + 16*b + 4*kk, 4)
def rV(b, u, T): return vr(VF + 16*b + 8*u + 4*T, 4)

def qk(X, kb, kk):
    c = "0" if kk == 0 else rS(X)
    return f"v_mfma_f32_32x32x16_bf16 {rS(X)}, {rK(kb,kk)}, {rQ(X,kk)}, {c}"
def pv(X, vb, j):
    u, T = j >> 1, j & 1
    return f"v_mfma_f32_32x32x16_bf16 {rO(X,T)}, {rV(vb,u,T)}, {rP(X,u)}, {rO(X,T)}"
def rdK(slot, kb, kk):
    return f"ds_read_b128 {rK(kb,kk)}, v{KA+kk} offset:{slot*4096}"
def rdV(slot, vb, u, T, b):
    d = VF + 16*vb + 8*u + 4*T + 2*b
    return f"ds_read_b64_tr_b16 {vr(d,2)}, v{VA+2*T+b} offset:{slot*4096 + u*2048}"
def ex(X, e): return f"v_exp_f32 v{S+16*X+e}, v{S+16*X+e}"
def cv(X, j): return f"v_cvt_pk_bf16_f32 v{P+8*X+j}, v{S+16*X+2*j}, v{S+16*X+2*j+1}"
def gap_valu(g):
    n = (g + 1) % 16
    Xn, jn = (1 if n < 8 else 0), n & 7
    X, j = (1 if g < 8 else 0), g & 7
    return [ex(Xn, 2*jn), ex(Xn, 2*jn+1), cv(X, j)]
WIN = E("WIN", "0")
if WIN:
    HALF = [("e0 e1 e2"), ("e3 e4 c0 c1"), ("e5 e6 e7"), ("c2 c3"), ("e8 e9 e10"), ("e11 e12 c4 c5"), ("e13 e14 e15"), ("c6 c7")]
    def gap_valu(g):
        X = 1 if g < 8 else 0
        return [ex(X, int(t[1:])) if t[0] == "e" else cv(X, int(t[1:])) for t in HALF[g & 7].split()]
def reads(p):
    r = [rdK((p+1) % RING, (p+1) & 1, kk) for kk in range(4)]
    r += [rdV(p % RING, p & 1, u, T, b) for u in range(2) for T in range(2) for b in range(2)]
    return r

CHECK = sorted({(NA - 1) % RING, (NB - 1) % RING})
def checks_before(n): return sum(1 for r in range(1, n - 1) if r % RING in CHECK)
def round_body(a, p, exit_label):
    kb = p & 1; vb = (p+1) & 1
    mf = [qk(0, kb, k) for k in range(4)] + [pv(0, vb, j) for j in range(4)] + \
         [qk(1, kb, k) for k in range(4)] + [pv(1, vb, j) for j in range(4)]
    rd = reads(p)
    nv = rd[:3] + ["s_waitcnt lgkmcnt(3)"] + rd[3:]
    nv += ["s_barrier" if p % BR == BR - 1 else ""]
    if p in CHECK:
        nv += ["s_sub_u32 s12, s12, 1\ns_waitcnt lgkmcnt(8)", f"s_cbranch_scc1 {exit_label}"]
    else:
        nv += ["s_waitcnt lgkmcnt(8)", ""]
    if WIN:
        bar = "s_barrier" if p % BR == BR - 1 else ""
        hi = "s_setprio 3" if WIN == 1 else ""
        lo = "s_setprio 0" if WIN == 1 else ("s_nop 0\ns_nop 0" if WIN == 2 else "")
        nv = [hi, rd[0], rd[1], rd[2] + "\ns_waitcnt lgkmcnt(3)",
              hi, rd[3], rd[4], rd[5] + "\n" + rd[6],
              hi, rd[7], rd[8], rd[9] + "\n" + rd[10],
              hi, rd[11], bar, "s_waitcnt lgkmcnt(8)"]
        if p in CHECK:
            nv[14] += "\ns_sub_u32 s12, s12, 1"
            nv[15] += f"\ns_cbranch_scc1 {exit_label}"
        for g in range(16):
            a(mf[g]); a(nv[g])
            for op in gap_valu(g): a(op)
            if g % 4 == 3: a(lo)
        return
    for g in range(16):
        a(mf[g]); a(nv[g])
        for op in gap_valu(g): a(op)

def gen_attention(a):
    a(f"""
    s_setprio {int(os.environ.get("PRIO_A", "0"))}
    v_and_b32 v1, 63, v0
    v_lshlrev_b32 v10, 4, v1
    s_lshl_b32 s13, s8, 3
    s_lshl_b32 s14, s3, 1
    s_add_u32 s13, s13, s14
    s_lshl_b32 s14, s13, 12
    s_add_u32 s15, s14, 0x1000
    s_waitcnt lgkmcnt(0)
    """)
    srd(a, 16, 4, 5, QF, NT32*4096)
    for X in range(2):
        for kk in range(4):
            a(f"buffer_load_dwordx4 {rQ(X,kk)}, v10, s[16:19], s{14+X} offen offset:{kk*1024}")
    a(f"""
    v_and_b32 v11, 31, v0            ; row i
    v_lshrrev_b32 v12, 5, v1         ; hi
    v_bfe_u32 v13, v11, 1, 1
    v_lshlrev_b32 v13, 2, v13
    v_bfe_u32 v14, v11, 2, 2
    v_or_b32 v13, v13, v14           ; f(i)
    v_xor_b32 v13, v13, v12          ; hi ^ f
    v_lshlrev_b32 v11, 7, v11
    """)
    for kk in range(4):
        a(f"v_xor_b32 v14, {2*kk}, v13")
        a(f"v_lshl_add_u32 v{KA+kk}, v14, 4, v11")
    a(f"""
    v_bfe_u32 v11, v0, 2, 2          ; rr
    v_lshl_add_u32 v13, v12, 2, v11  ; 4hi+rr
    v_lshlrev_b32 v13, 7, v13
    v_and_b32 v14, 1, v0
    v_lshl_add_u32 v13, v14, 3, v13  ; + (c4&1)*8
    v_bfe_u32 v14, v0, 4, 1
    v_lshlrev_b32 v14, 1, v14
    v_bfe_u32 v15, v0, 1, 1
    v_or_b32 v14, v14, v15           ; 2x + (c4>>1)
    v_lshrrev_b32 v11, 1, v11
    v_lshl_or_b32 v11, v11, 2, v12
    v_xor_b32 v14, v14, v11
    """)
    for T in range(2):
        for b in range(2):
            a(f"v_xor_b32 v15, {(4*T) ^ (2*b)}, v14")
            a(f"v_lshl_add_u32 v{VA+2*T+b}, v15, 4, v13")
            if b: a(f"v_add_u32 v{VA+2*T+b}, {8*128}, v{VA+2*T+b}")
    for i in range(64):
        a(f"v_mov_b32 v{O+i}, 0")
    a("s_cmp_eq_u32 s9, 4")
    a(f"s_cselect_b32 s12, {checks_before(NB)}, {checks_before(NA)}")
    a("s_barrier")
    for kk in range(4): a(rdK(0, 0, kk))
    a("s_waitcnt vmcnt(0) lgkmcnt(0)")
    rd = reads(0)
    for k in range(4):
        a(qk(0, 0, k)); a(rd[k])
    for k in range(4):
        a(qk(1, 0, k)); a(rd[4+2*k]); a(rd[5+2*k])
    if BR == 1: a("s_barrier")
    if not WIN:
        for op in gap_valu(7)[:2]: a(op)
    for g in range(8, 16):
        for op in gap_valu(g): a(op)
    a("s_waitcnt lgkmcnt(0)")
    stamp(a, 72)
    a("s_branch K2_R1")
    a.raw(".p2align 6")
    a.label("K2_R0")
    for p in range(RING):
        if p == 1: a.label("K2_R1")
        round_body(a, p, f"K2_E{p&1}")
    a("s_branch K2_R0")
    for par in range(2):
        a.label(f"K2_E{par}")
        a("s_waitcnt lgkmcnt(0)")
        for op in gap_valu(15): a(op)
        vb = par
        for g in range(8):
            if g % 2 == 0: a(pv(0, vb, g // 2))
            for op in (gap_valu(g) if (g < 7 or WIN) else gap_valu(g)[2:]): a(op)
        for j in range(4): a(pv(1, vb, j))
        if par == 0: a("s_branch K2_EPI")
    a.label("K2_EPI")
    stamp(a, 74)
    a(f"""
    s_mul_i32 s20, s9, 392
    s_add_u32 s20, s20, s13
    s_lshl_b32 s20, s20, 12
    s_add_u32 s21, s20, 0x1000
    s_mul_i32 s22, s9, {QROWS*4}
    s_lshl_b32 s23, s13, 7
    s_add_u32 s22, s22, s23
    """)
    srd(a, 16, 4, 5, PO, 5*392*4096)
    srd(a, 24, 4, 5, PL, 5*QROWS*4)
    a("v_and_b32 v11, 31, v0")
    a("v_lshlrev_b32 v11, 2, v11")
    a("s_nop 7")
    for X in range(2):
        for T in range(2):
            for i in range(8):
                a(f"v_cvt_pk_bf16_f32 v{S+16*X+8*T+i}, v{O+32*X+16*T+2*i}, v{O+32*X+16*T+2*i+1}")
            for rho in range(2):
                a(f"buffer_store_dwordx4 {vr(S+16*X+8*T+4*rho,4)}, v10, s[16:19], s{20+X} offen offset:{(2*T+rho)*1024}")
    a("s_mov_b32 exec_lo, 0")
    for X in range(2):
        a(f"buffer_store_dword v{O+32*X+31}, v11, s[24:27], s22 offen offset:{X*128}")
    diag_store(a)
    a("s_endpgm")

VDMA = 2; VCNT = 3; VSEG = 4; VLP = 5; VLP1 = 6; VHL = 7; VDI = 8
VTWO = 10; VT = 11
IDX = 16
A16 = 24
A32 = 28
RK = 36
AD = 44
VLA = 52
VNB = 54
EN = 56
DS_ = 104
NSET = DEPTH + 1

class VM:
    def __init__(self): self.q = []; self.tile = 0
    def issue(self, tag): self.q.append(tag)
    def after(self, tag):
        i = len(self.q) - 1 - self.q[::-1].index(tag)
        return len(self.q) - 1 - i
    def copy(self):
        v = VM(); v.q = list(self.q); v.tile = self.tile; return v

def dma(a, vm=None):
    a(f"""
    s_and_b32 s41, s14, {hex(RING*4096-1)}
    s_add_u32 m0, s41, s15
    s_nop 0
    buffer_load_dwordx4 v{VDMA}, s[16:19], s14 offen lds{DFLAG}
    s_add_u32 s14, s14, 0x1000
    """)
    if vm is not None:
        vm.issue(("t", vm.tile)); vm.tile += 1
def dma_slice(a, vm, r):
    n = 0
    while vm.tile <= r + DD and n < 2:
        dma(a, vm); n += 1
def dyn_end(a, n, label, mid=None):
    a(f"s_cmp_lg_u32 s12, s70")
    if mid: mid()
    a(f"s_cbranch_scc1 {label}")
    if n is not None: a(f"s_waitcnt vmcnt({min(n, 63)})")
    a("s_barrier")
    a(f"s_add_u32 s70, s70, {BR}")
    a(f"s_cmp_ge_u32 s70, s11")
    a(f"s_cselect_b32 s70, -1, s70")
    a.label(label)
    a("s_add_u32 s12, s12, 1")

def flush1(a, i):
    a(f"v_add_u32_sdwa v{A32+2*i}, v{A16+i}, v{A32+2*i} dst_sel:DWORD dst_unused:UNUSED_PAD src0_sel:WORD_0 src1_sel:DWORD")
    a(f"v_add_u32_sdwa v{A32+2*i+1}, v{A16+i}, v{A32+2*i+1} dst_sel:DWORD dst_unused:UNUSED_PAD src0_sel:WORD_1 src1_sel:DWORD")
def finalize(a, rho, from_int=True):
    if from_int:
        for i in range(4): flush1(a, i)
        for i in range(8):
            a(f"v_cvt_f32_i32 v{A32+i}, v{A32+i}")
    for i in range(8):
        a(f"v_mul_f32 v{A32+i}, v{A32+i}, v{VDI+rho}")
    for i in range(4):
        a(f"v_cvt_pk_bf16_f32 v{VT+1+i}, v{A32+2*i}, v{A32+2*i+1}")
    a(f"buffer_store_dwordx4 {vr(VT+1,4)}, v{VHL}, s[28:31], {'s42' if rho else '0'} offen")
    if from_int and rho == 0:
        for i in range(8):
            a(f"v_mov_b32 v{A32+i}, v{VNB}")
        for i in range(4):
            a(f"v_mov_b32 v{A16+i}, 0")

def gen_aux(a):
    vm = VM()
    a.label("K2_AUX")
    a(f"""
    s_setprio {E("PRIO_X", "3")}
    s_sub_u32 s13, s3, 4
    s_lshl_b32 s15, s13, 10
    v_and_b32 v1, 63, v0
    v_lshlrev_b32 v{VDMA}, 4, v1
    v_add_u32 v{VDMA}, s15, v{VDMA}
    s_lshl_b32 s41, s10, 12
    s_add_u32 s41, s41, {hex(HI)}
    s_lshl_b32 s42, s11, 12
    s_mov_b32 s14, 0
    s_mov_b32 s40, 0
    v_subrev_u32 v{VT}, 256, v0           ; ta
    s_mov_b32 s43, {CHUNK_B}
    v_mul_lo_u32 v{VSEG}, v{VT}, s43
    s_lshl_b32 s43, s64, 2
    s_waitcnt lgkmcnt(0)
    """)
    srd(a, 16, 4, 5, "s41", "s42")
    for i in range(BR + 1): dma(a, vm)
    vm_idle = vm.copy()
    a(f"s_cmp_ge_u32 s64, {NBIN}")
    a(f"s_cbranch_scc1 K2_IDLE0")
    srd(a, 20, 4, 5, BINS, NCHUNK*CHUNK_B)
    a(f"buffer_load_dword v{VCNT}, v{VSEG}, s[20:23], s43 offen"); vm.issue("desc")
    srd(a, 24, 4, 5, T16, N, stride=128)
    a(f"s_lshl_b32 s41, s64, 13")
    a(f"s_add_u32 s41, s41, {hex(HL)}")
    srd(a, 28, 4, 5, "s41", 8192)
    srd(a, 32, 6, 7, 0, N*2)
    a(f"""
    v_mov_b32 v{VT+1}, -1
    v_mov_b32 v{VT+2}, -1
    v_mov_b32 v{VT+3}, -1
    v_mov_b32 v{VT+4}, -1
    v_lshlrev_b32 v{VT}, 4, v{VT}
    v_add_u32 v{VT}, {LB}, v{VT}
    """)
    for i in range(5):
        a(f"ds_write_b128 v{VT}, {vr(VT+1,4)} offset:{4096*i}")
    a(f"""
    v_mul_u32_u24 v{VT+1}, {LSTR}, v1
    v_add_u32 v{VT+1}, {LB}, v{VT+1}
    v_lshlrev_b32 v{VLA}, 2, v1
    v_add_u32 v{VLA}, {CNT}, v{VLA}
    ds_write_b32 v{VLA}, v{VT+1}
    v_mov_b32 v{VTWO}, 2
    v_mov_b32 v{VLA+1}, {CNT}
    v_lshrrev_b32 v{VT}, 3, v1            ; g
    s_lshl_b32 s41, s13, 3
    v_add_u32 v{VT}, s41, v{VT}
    v_mul_u32_u24 v{VLP}, {LSTR}, v{VT}
    v_add_u32 v{VLP}, {LB}, v{VLP}
    v_add_u32 v{VLP1}, {32*LSTR}, v{VLP}
    v_and_b32 v{VT+1}, 7, v1
    v_lshlrev_b32 v{VT+1}, 4, v{VT+1}     ; c*16
    v_lshl_add_u32 v{VHL}, v{VT}, 7, v{VT+1}
    s_lshl_b32 s41, s64, 6
    v_add_lshl_u32 v{VDI+1}, s41, v{VT}, 1
    buffer_load_ushort v{VDI}, v{VDI+1}, s[32:35], 0 offen
    buffer_load_ushort v{VDI+1}, v{VDI+1}, s[32:35], 0 offen offset:64
    """)
    vm.issue("deg"); vm.issue("deg")
    for k in range(G):
        a(f"v_mov_b32 v{IDX+2*k+1}, v{VT+1}")
    for i in range(4): a(f"v_mov_b32 v{A16+i}, 0")
    for i in range(4*G, 4*G*NSET): a(f"v_mov_b32 v{DS_+i}, 0")
    a(f"""
    s_movk_i32 s42, 0x1000
    s_mov_b32 s65, 0x0c060c02
    s_waitcnt vmcnt({vm.after(("t", BR))}) lgkmcnt(0)
    s_barrier
    """)
    r = 0
    def super_dma():
        for k in range(BR): dma_slice(a, vm, r + k)
    def super_end():
        nonlocal r
        r += BR
        a(f"s_waitcnt vmcnt({min(63, vm.after(('t', r + BR)))})")
        a("s_barrier")
    def to_dynamic():
        a(f"s_mov_b32 s12, {r}")
        a(f"s_mov_b32 s70, {r + (BR - 1 - r) % BR}")
    super_dma()
    a(f"""
    s_waitcnt vmcnt({vm.after("desc")})
    v_and_b32 v{VT}, 0xffff, v{VCNT}
    v_lshl_add_u32 v{VSEG}, v{VT}, 2, v{VSEG}
    v_lshrrev_b32 v{VCNT}, 16, v{VCNT}
    """)
    for k in range(12):
        if k >= 2:
            a(f"v_cmp_lt_u32 vcc, {4*k}, v{VCNT}")
            a(f"s_or_b64 exec, vcc, 1")
        a(f"buffer_load_dwordx4 {vr(EN+4*k,4)}, v{VSEG}, s[20:23], 0 offen offset:{1024+16*k}"); vm.issue(("seg", k))
    a(f"""
    s_mov_b64 exec, -1
    v_cmp_lt_u32 vcc, 48, v{VCNT}
    s_and_saveexec_b64 s[48:49], vcc
    v_mov_b32 v{VT+1}, 0x10000
    ds_add_u32 v{VLA+1}, v{VT+1}
    s_mov_b64 exec, -1
    s_mov_b64 s[62:63], -1
    """)
    super_end()
    PER = E("INS", "12")
    if E("NOINS", "0"): a("s_mov_b64 s[62:63], 0")
    for sl in range(48 // PER):
        super_dma()
        a(f"s_waitcnt vmcnt({vm.after(('seg', (sl*PER + PER - 1) // 4))})")
        a("s_mov_b64 exec, s[62:63]")
        for j in range(PER):
            e = sl*PER + j
            a(f"v_cmpx_lt_u32 s[62:63], {e}, v{VCNT}")
            if j % 2 == 0: a(f"s_cbranch_execz K2_INS{sl}")
            a(f"v_perm_b32 v{AD}, v{VLA+1}, v{EN+e}, s65")
            a(f"ds_add_rtn_u32 v{RK}, v{AD}, v{VTWO}")
            a(f"s_waitcnt lgkmcnt(0)")
            a(f"v_min_u32 v{RK}, {LB+64*LSTR}, v{RK}")
            a(f"ds_write_b16 v{RK}, v{EN+e}")
        a.label(f"K2_INS{sl}")
        a("s_mov_b64 exec, -1")
        a("s_waitcnt lgkmcnt(0)")
        super_end()
    dma_slice(a, vm, r)
    a(f"""
    ds_read_b32 v{VT}, v{VLA}
    v_lshrrev_b32 v{VT+2}, 3, v1
    s_lshl_b32 s41, s13, 5
    s_add_u32 s41, s41, {CNT}
    v_lshl_add_u32 v{VT+2}, v{VT+2}, 2, s41
    ds_read_b32 v{VT+3}, v{VT+2}
    ds_read_b32 v{VNB}, v{VT+2} offset:128
    ds_read_u16 v{IDX}, v{VLP}
    v_mul_u32_u24 v{VT+1}, {LSTR}, v1
    v_lshlrev_b32 v{VDI}, 16, v{VDI}
    v_lshlrev_b32 v{VDI+1}, 16, v{VDI+1}
    v_mul_f32 v{VDI}, {hex(f32bits(1/TSC))}, v{VDI}
    v_mul_f32 v{VDI+1}, {hex(f32bits(1/TSC))}, v{VDI+1}
    s_waitcnt lgkmcnt(1)
    v_sub_u32 v{VT}, v{VT}, v{VT+1}
    v_subrev_u32 v{VT}, {LB}, v{VT}
    v_cmp_lt_u32 vcc, 256, v{VT}
    s_cmp_lg_u64 vcc, 0
    s_cselect_b32 s40, 1, 0
    v_sub_u32 v{VT+3}, v{VLP}, v{VT+3}    ; -2*count
    v_sub_u32 v{VNB}, v{VLP1}, v{VNB}
    v_mul_i32_i24 v{VT+3}, {TBIAS//2}, v{VT+3}
    v_mul_i32_i24 v{VNB}, {TBIAS//2}, v{VNB}
    """)
    for i in range(8): a(f"v_mov_b32 v{A32+i}, v{VT+3}")
    for sh in (1, 2, 4):
        a(f"v_max_u32_dpp v{VT}, v{VT}, v{VT} row_shr:{sh} row_mask:0xf bank_mask:0xf bound_ctrl:0")
    a(f"""
    s_lshl_b32 s41, s13, 3
    s_add_u32 s41, s41, 7
    s_add_u32 s43, s41, 32
    v_readlane_b32 s36, v{VT}, s41
    v_readlane_b32 s37, v{VT}, s43
    s_add_u32 s36, s36, 7
    s_lshr_b32 s36, s36, 3
    s_max_u32 s36, s36, 1
    s_add_u32 s37, s37, 7
    s_lshr_b32 s37, s37, 3
    s_max_u32 s37, s37, 1
    s_add_u32 s37, s37, s36
    s_mov_b32 s38, 0
    s_mov_b32 s39, {-DEPTH}
    """)
    assert vm.tile == r + DD + 1, (vm.tile, r)
    assert YOUNG - 1 >= DEPTH - 1
    a(f"s_waitcnt vmcnt({vm.after(('t', min(vm.tile - 1, r + DEPTH + BR + 1)))})")
    r += 1
    to_dynamic()
    a("s_cmp_lg_u32 s40, 0")
    a("s_cbranch_scc1 K2_IDLE")
    stamp(a, 72)
    a.label("K2_G")
    assert NSET >= 5 and NSET * G <= 20
    for s in range(NSET):
        c = DS_ + 4*G*((s+1) % NSET)
        adds = []
        for h in range(2):
            for i in range(4):
                acc = "0" if (h == 0 and s >= 1 and i == s - 1) else f"v{A16+i}"
                adds.append(f"v_add3_u32 v{A16+i}, v{c+8*h+i}, v{c+8*h+4+i}, {acc}")
        nxt = (s + 1) % NSET
        if E("NOADD", "0"): adds = [""] * 8
        ld = [f"buffer_load_dwordx4 {vr(DS_+4*G*s+4*k,4)}, {vr(IDX+2*(k&1),2)}, s[24:27], 0 idxen offen{GFLAG}" for k in range(G)]
        if E("NOLD", "0"): ld = [f"buffer_load_dword v{DS_+4*G*s+4*k}, v{VTWO}, s[32:35], s70 offen" for k in range(G)]
        rd = [f"ds_read_u16 v{IDX+2*((k+1)&1)}, v{VLP} offset:{2*G*s+2*k+2}" for k in range(G-1)]
        rd.append(f"ds_read_u16 v{IDX}, v{VLP} offset:{2*G*nxt}")
        a(f"""
        s_waitcnt vmcnt({(DEPTH-1)*(G+1)}) lgkmcnt(0)
        {rd[0]}
        {adds[0]}
        {ld[0]}
        s_and_b32 s41, s14, {hex(RING*4096-1)}
        s_add_u32 m0, s41, s15
        {adds[1]}
        s_waitcnt lgkmcnt(0)
        {rd[1]}
        {adds[2]}
        {ld[1]}
        s_add_u32 s38, s38, 1
        {adds[3]}
        s_waitcnt lgkmcnt(0)
        {rd[2]}
        {adds[4]}
        {ld[2]}
        s_cmp_lg_u32 s38, s36
        {adds[5]}
        """)
        if nxt == 0: a(f"v_add_u32 v{VLP}, {2*G*NSET}, v{VLP}")
        a(f"""
        s_cbranch_scc1 K2_GA{s}
        v_subrev_u32 v{VLP}, {2*G*nxt}, v{VLP1}
        K2_GA{s}:
        s_waitcnt lgkmcnt(0)
        {rd[3]}
        {adds[6]}
        {ld[3]}
        s_add_u32 s39, s39, 1
        s_cmp_eq_u32 s39, s37
        {adds[7]}
        buffer_load_dwordx4 v{VDMA}, s[16:19], s14 offen lds{DFLAG}
        s_add_u32 s14, s14, 0x1000
        s_cmp_eq_u32 s39, s37
        s_cbranch_scc1 K2_GDONE
        s_cmp_lg_u32 s39, s36
        s_cbranch_scc1 K2_GB{s}
        """)
        finalize(a, 0)
        a.label(f"K2_GB{s}")
        dyn_end(a, None, f"K2_GC{s}", (lambda: flush1(a, s)) if s < 4 else None)
    a("s_branch K2_G")
    a.label("K2_GDONE")
    stamp(a, 74)
    finalize(a, 1)
    dyn_end(a, YOUNG, "K2_GCX")
    a("s_branch K2_IDLE")
    a.label("K2_IDLE0")
    vm = vm_idle; r = 0
    a(f"s_waitcnt vmcnt(0)")
    a("s_barrier")
    while vm.tile < r + DD:
        super_dma(); super_end()
    assert vm.tile == r + DD
    to_dynamic()
    a.label("K2_IDLE")
    a("s_cmp_eq_u32 s70, -1")
    a("s_cbranch_scc1 K2_AEND")
    dma(a)
    dyn_end(a, YOUNG, "K2_IC")
    a("s_branch K2_IDLE")
    a.label("K2_AEND")
    diag_store(a)
    a("s_cmp_eq_u32 s40, 0")
    a("s_cbranch_scc1 K2_END")
    gen_slow(a)

def gen_slow(a):
    ACC = LB
    a(f"""
    s_waitcnt vmcnt(0) lgkmcnt(0)
    s_barrier
    v_subrev_u32 v{VT}, 256, v0
    v_lshlrev_b32 v{VT}, 4, v{VT}
    v_add_u32 v{VT}, {ACC}, v{VT}
    v_mov_b32 v{VT+1}, 0
    v_mov_b32 v{VT+2}, 0
    v_mov_b32 v{VT+3}, 0
    v_mov_b32 v{VT+4}, 0
    """)
    for i in range(4):
        a(f"ds_write_b128 v{VT}, {vr(VT+1,4)} offset:{4096*i}")
    a(f"""
    s_waitcnt lgkmcnt(0)
    s_barrier
    s_mov_b32 s44, s13
    v_lshrrev_b32 v{RK}, 3, v1         ; g
    v_and_b32 v{RK+1}, 7, v1
    v_lshlrev_b32 v{RK+1}, 5, v{RK+1}
    v_add_u32 v{RK+1}, {ACC}, v{RK+1}
    K2_S0:
    s_mul_i32 s45, s44, {CHUNK_B}
    s_lshl_b32 s46, s64, 2
    s_add_u32 s46, s46, s45
    v_mov_b32 v{VT}, 0
    buffer_load_dword v{VT+1}, v{VT}, s[20:23], s46 offen
    s_waitcnt vmcnt(0)
    v_readfirstlane_b32 s46, v{VT+1}
    s_lshr_b32 s47, s46, 16            ; count
    s_and_b32 s46, s46, 0xffff
    s_lshl_b32 s46, s46, 2
    s_add_u32 s45, s45, s46
    v_mov_b32 v{RK+2}, v{RK}
    K2_S1:
    v_cmp_gt_u32 vcc, s47, v{RK+2}
    s_and_saveexec_b64 s[48:49], vcc
    s_cbranch_execz K2_S2
    v_lshlrev_b32 v{VT}, 2, v{RK+2}
    buffer_load_dword v{VT+1}, v{VT}, s[20:23], s45 offen offset:1024
    s_waitcnt vmcnt(0)
    v_and_b32 v{IDX}, 0xffff, v{VT+1}
    buffer_load_dwordx4 {vr(DS_,4)}, {vr(IDX,2)}, s[24:27], 0 idxen offen
    v_bfe_u32 v{VT}, v{VT+1}, 18, 6
    v_lshl_add_u32 v{VT}, v{VT}, 8, v{RK+1}
    s_waitcnt vmcnt(0)
    """)
    for i in range(4):
        a(f"v_cvt_f32_u32_sdwa v{A32+2*i}, v{DS_+i} dst_sel:DWORD dst_unused:UNUSED_PAD src0_sel:WORD_0")
        a(f"v_cvt_f32_u32_sdwa v{A32+2*i+1}, v{DS_+i} dst_sel:DWORD dst_unused:UNUSED_PAD src0_sel:WORD_1")
    for i in range(8):
        a(f"v_subrev_f32 v{A32+i}, {hex(f32bits(float(TBIAS)))}, v{A32+i}")
    for i in range(8):
        a(f"ds_add_f32 v{VT}, v{A32+i} offset:{4*i}")
    a(f"""
    s_mov_b64 exec, -1
    v_add_u32 v{RK+2}, 8, v{RK+2}
    s_branch K2_S1
    K2_S2:
    s_mov_b64 exec, -1
    s_add_u32 s44, s44, 4
    s_cmp_lt_u32 s44, {NCHUNK}
    s_cbranch_scc1 K2_S0
    s_waitcnt lgkmcnt(0)
    s_barrier
    v_lshlrev_b32 v{VT}, 1, v{VHL}      ; local*256 + c*32
    v_add_u32 v{VT}, {ACC}, v{VT}
    """)
    for rho in range(2):
        a(f"ds_read_b128 {vr(A32,4)}, v{VT} offset:{8192*rho}")
        a(f"ds_read_b128 {vr(A32+4,4)}, v{VT} offset:{8192*rho+16}")
        a("s_waitcnt lgkmcnt(0)")
        finalize(a, rho, from_int=False)

def gen_k2(a):
    header(a, "attn_kernel")
    a(f"""
    s_cmp_ge_u32 s2, {K2_GRID}
    s_cbranch_scc1 K2_END
    s_load_dwordx2 s[4:5], s[0:1], 88
    s_load_dwordx2 s[6:7], s[0:1], 24
    """)
    if DIAG:
        a("s_memrealtime s[68:69]")
        stamp(a, 90)
        a("s_mov_b32 s72, 0")
        a("s_mov_b32 s74, 0")
    a(f"""
    v_lshrrev_b32 v1, 6, v0
    s_and_b32 s66, s2, 7
    s_lshr_b32 s67, s2, 3               ; j
    v_readfirstlane_b32 s3, v1
    s_mul_i32 s8, s67, 52
    s_lshr_b32 s8, s8, 8                ; j / 5
    s_mul_i32 s9, s8, 5
    s_sub_u32 s9, s67, s9               ; split = j % 5
    s_mul_i32 s64, s66, 24
    s_lshl_b32 s67, s8, 2
    s_add_u32 s64, s64, s67
    s_lshl_b32 s8, s8, 3
    s_add_u32 s8, s8, s66               ; q block
    s_cmp_ge_u32 s2, 240
    s_cselect_b32 s8, 48, s8
    s_cselect_b32 s9, s66, s9
    s_cselect_b32 s64, 192, s64
    s_add_u32 s64, s64, s9
    s_mul_i32 s10, s9, {NA}
    s_cmp_eq_u32 s9, 4
    s_cselect_b32 s64, 255, s64
    {"s_mov_b32 s64, 255" if E("NOBINS", "0") else ""}
    s_movk_i32 s11, {NA}
    s_cselect_b32 s11, {NB}, s11
    s_cmp_ge_u32 s3, 4
    s_cbranch_scc1 K2_AUX
    """)
    gen_attention(a)
    gen_aux(a)
    a.label("K2_END")
    a("s_endpgm")
    return kd("attn_kernel", max(224, DS_ + 4*G*NSET))
```

```python
from common import *
import os
TOUCH = int(os.environ.get('TOUCH', '0'))
K3W = int(os.environ.get("K3W", "2"))
K3_GRID = 433 if K3W == 2 else 217
K3_BLOCK = 64 * K3W
K3_LDS = 4096 * K3W
PB = 16
WG = 96
WL = 112
HB = 128
XB = 144
LB_ = 152
YG = 160
YL = 176

def gen_k3(a):
    header(a, "fin_kernel")
    a(f"""
    s_load_dwordx2 s[4:5], s[0:1], 88
    s_load_dwordx2 s[6:7], s[0:1], 0
    s_load_dwordx2 s[8:9], s[0:1], 72
    v_lshrrev_b32 v1, 6, v0
    v_and_b32 v2, 63, v0
    s_and_b32 s10, s2, 7
    s_lshl_b32 s10, s10, 3
    v_readfirstlane_b32 s52, v1         ; wave
    """)
    if K3W == 2:
        a("""
        s_bfe_u32 s11, s2, 0x30003
        s_or_b32 s10, s10, s11
        s_andn2_b32 s11, s2, 63
        s_or_b32 s10, s10, s11
        """)
    else:
        a("""
        s_bfe_u32 s11, s2, 0x20003
        s_lshl_b32 s11, s11, 1
        s_or_b32 s10, s10, s11
        s_andn2_b32 s11, s2, 31
        s_lshl_b32 s11, s11, 1
        s_or_b32 s10, s10, s11
        s_lshr_b32 s11, s52, 1
        s_or_b32 s10, s10, s11
        """)
    a(f"""
    s_and_b32 s3, s52, 1                ; Tf
    s_cmp_ge_u32 s10, {NT32}
    s_cbranch_scc1 K3_END
    v_lshlrev_b32 v3, 4, v2             ; lane*16
    v_and_b32 v4, 31, v0
    v_lshlrev_b32 v5, 2, v4             ; q*4
    v_lshrrev_b32 v6, 5, v2             ; hi
    v_lshlrev_b32 v7, 7, v4
    v_lshl_add_u32 v7, v6, 4, v7        ; q*128 + hi*16
    s_lshl_b32 s11, s10, 12
    s_lshl_b32 s12, s10, 7
    s_waitcnt lgkmcnt(0)
    """)
    srd(a, 32, 6, 7, 0, N*128)
    a("s_lshl_b32 s14, s3, 6")
    a("v_add_u32 v8, s11, v7")
    a("v_add_u32 v8, s14, v8")
    for r in range(2):
        a(f"buffer_load_dwordx4 {vr(XB+4*r,4)}, v8, s[32:35], 0 offen offset:{r*32}")
    srd(a, 16, 4, 5, PL, 5*QROWS*4)
    srd(a, 20, 4, 5, PO, 5*392*4096)
    for s in range(5):
        a(f"buffer_load_dword v{LB_+s}, v5, s[16:19], s12 offen")
        if s < 4: a(f"s_add_u32 s12, s12, {QROWS*4}")
    a("s_mov_b32 s13, s11")
    srd(a, 24, 4, 5, WF, 16384)
    a("s_lshl_b32 s14, s3, 12")
    a("s_add_u32 s15, s14, 0x2000")
    srd(a, 28, 4, 5, HL, QROWS*128)
    for kk in range(4):
        a(f"buffer_load_dwordx4 {vr(WL+4*kk,4)}, v3, s[24:27], s15 offen offset:{kk*1024}")
    for kk in range(4):
        a(f"buffer_load_dwordx4 {vr(HB+4*kk,4)}, v7, s[28:31], s11 offen offset:{kk*32}")
    for kk in range(4):
        a(f"buffer_load_dwordx4 {vr(WG+4*kk,4)}, v3, s[24:27], s14 offen offset:{kk*1024}")
    for s in range(5):
        for kk in range(4):
            a(f"buffer_load_dwordx4 {vr(PB+16*s+4*kk,4)}, v3, s[20:23], s13 offen offset:{kk*1024}")
        if s < 4: a(f"s_add_u32 s13, s13, {392*4096}")
    srd(a, 36, 8, 9, 0, N*128)
    if TOUCH: a("buffer_load_dword v158, v8, s[36:39], 0 offen")
    a(f"""
    s_waitcnt vmcnt({32+TOUCH})
    v_add_f32 v{LB_}, v{LB_}, v{LB_+1}
    v_add_f32 v{LB_+2}, v{LB_+2}, v{LB_+3}
    v_add_f32 v{LB_}, v{LB_}, v{LB_+4}
    v_add_f32 v{LB_}, v{LB_}, v{LB_+2}
    s_mov_b32 s40, {hex(f32bits(2.0**-80))}
    s_mov_b32 s41, {hex(f32bits(2.0**120))}
    v_cmp_le_f32 vcc, s40, v{LB_}
    v_cmp_ge_f32 s[42:43], s41, v{LB_}
    s_and_b64 vcc, vcc, s[42:43]
    s_cmp_eq_u64 vcc, -1
    s_cbranch_scc0 K3_EXACT
    K3_GO:
    v_rcp_f32 v{LB_}, v{LB_}
    """)
    XU = 192
    for i in range(8):
        a(f"v_lshlrev_b32 v{XU+2*i}, 16, v{XB+i}")
        a(f"v_and_b32 v{XU+2*i+1}, 0xffff0000, v{XB+i}")
    a(f"s_waitcnt vmcnt({24+TOUCH})")
    for kk in range(4):
        c = vr(XU, 16) if kk == 0 else vr(YL, 16)
        a(f"v_mfma_f32_32x32x16_bf16 {vr(YL,16)}, {vr(WL+4*kk,4)}, {vr(HB+4*kk,4)}, {c}")
    for s in range(5):
        a(f"s_waitcnt vmcnt({16 - 4*s + TOUCH})")
        for kk in range(4):
            c = "0" if (s == 0 and kk == 0) else vr(YG, 16)
            a(f"v_mfma_f32_32x32x16_bf16 {vr(YG,16)}, {vr(WG+4*kk,4)}, {vr(PB+16*s+4*kk,4)}, {c}")
    for i in range(16):
        a(f"v_fmac_f32 v{YL+i}, v{YG+i}, v{LB_}")
    for i in range(8):
        a(f"v_cvt_pk_bf16_f32 v{XB+i}, v{YL+2*i}, v{YL+2*i+1}")
    for r in range(2):
        a(f"buffer_store_dwordx4 {vr(XB+4*r,4)}, v8, s[36:39], 0 offen offset:{r*32}")
    a.label("K3_END")
    a("s_endpgm")

    Qr, Kr, Vr, Sr, Pr, Or = 16, 32, 48, 64, 80, 192
    KA, VA, M, T0 = 9, 224, 13, 228
    a.label("K3_EXACT")
    a("s_waitcnt vmcnt(0)")
    srd(a, 44, 4, 5, QF, NT32*4096)
    srd(a, 48, 4, 5, HI, NT32*4096)
    for kk in range(4):
        a(f"buffer_load_dwordx4 {vr(Qr+4*kk,4)}, v3, s[44:47], s11 offen offset:{kk*1024}")
    a(f"""
    s_lshl_b32 s52, s52, 12
    v_bfe_u32 v14, v4, 1, 1
    v_lshlrev_b32 v14, 2, v14
    v_bfe_u32 v15, v4, 2, 2
    v_or_b32 v14, v14, v15
    v_xor_b32 v14, v14, v6
    v_lshlrev_b32 v15, 7, v4
    v_add_u32 v15, s52, v15
    """)
    for kk in range(4):
        a(f"v_xor_b32 v{T0}, {2*kk}, v14")
        a(f"v_lshl_add_u32 v{KA+kk}, v{T0}, 4, v15")
    a(f"""
    v_bfe_u32 v14, v0, 2, 2
    v_lshl_add_u32 v15, v6, 2, v14
    v_lshlrev_b32 v15, 7, v15
    v_and_b32 v{T0}, 1, v0
    v_lshl_add_u32 v15, v{T0}, 3, v15
    v_add_u32 v15, s52, v15
    v_bfe_u32 v{T0}, v0, 4, 1
    v_lshlrev_b32 v{T0}, 1, v{T0}
    v_bfe_u32 v{T0+1}, v0, 1, 1
    v_or_b32 v{T0}, v{T0}, v{T0+1}
    v_lshrrev_b32 v14, 1, v14
    v_lshl_or_b32 v14, v14, 2, v6
    v_xor_b32 v14, v14, v{T0}
    """)
    for T in range(2):
        for b in range(2):
            a(f"v_xor_b32 v{T0}, {(4*T) ^ (2*b)}, v14")
            a(f"v_lshl_add_u32 v{VA+2*T+b}, v{T0}, 4, v15")
            if b: a(f"v_add_u32 v{VA+2*T+b}, {8*128}, v{VA+2*T+b}")
    a(f"""
    v_add_u32 v{T0+2}, s52, v3
    v_mov_b32 v{M}, 0xff800000
    v_mov_b32 v{T0+3}, 0xff800000
    v_cmp_eq_u32 s[54:55], 1, v6
    s_waitcnt vmcnt(0)
    v_and_b32 v{T0}, 0xffff, v{Qr+15}
    v_cndmask_b32 v{Qr+15}, v{Qr+15}, v{T0}, s[54:55]
    """)
    for i in range(32): a(f"v_mov_b32 v{Or+i}, 0")
    a("s_mov_b32 s56, 0")
    a.label("K3_PASS")
    a("s_mov_b32 s53, 0")
    a.label("K3_TILE")
    for i in range(4):
        a(f"buffer_load_dwordx4 {vr(Kr+4*i,4)}, v3, s[48:51], s53 offen offset:{i*1024}")
    a("s_waitcnt vmcnt(0)")
    for i in range(4):
        a(f"ds_write_b128 v{T0+2}, {vr(Kr+4*i,4)} offset:{i*1024}")
    a("s_waitcnt lgkmcnt(0)")
    for kk in range(4):
        a(f"ds_read_b128 {vr(Kr+4*kk,4)}, v{KA+kk}")
    for u in range(2):
        for T in range(2):
            for b in range(2):
                a(f"ds_read_b64_tr_b16 {vr(Vr+8*u+4*T+2*b,2)}, v{VA+2*T+b} offset:{u*2048}")
    a("s_waitcnt lgkmcnt(0)")
    for kk in range(4):
        c = "0" if kk == 0 else vr(Sr, 16)
        a(f"v_mfma_f32_32x32x16_bf16 {vr(Sr,16)}, {vr(Kr+4*kk,4)}, {vr(Qr+4*kk,4)}, {c}")
    a("s_nop 15")
    a(f"s_cmp_lg_u32 s53, {(NT32-1)*4096}")
    a("s_cbranch_scc1 K3_NOMASK")
    for r in range(8, 12):
        a(f"v_cndmask_b32 v{Sr+r}, v{Sr+r}, v{T0+3}, s[54:55]")
    for r in range(12, 16):
        a(f"v_mov_b32 v{Sr+r}, v{T0+3}")
    a.label("K3_NOMASK")
    a("s_cmp_lg_u32 s56, 0")
    a("s_cbranch_scc1 K3_P2")
    for r in range(0, 16, 2):
        a(f"v_max3_f32 v{M}, v{M}, v{Sr+r}, v{Sr+r+1}")
    a("s_branch K3_NEXT")
    a.label("K3_P2")
    for r in range(16):
        a(f"v_sub_f32 v{Sr+r}, v{Sr+r}, v{M}")
    for r in range(16):
        a(f"v_exp_f32 v{Sr+r}, v{Sr+r}")
    for j in range(8):
        a(f"v_cvt_pk_bf16_f32 v{Pr+j}, v{Sr+2*j}, v{Sr+2*j+1}")
    for u in range(2):
        for T in range(2):
            a(f"v_mfma_f32_32x32x16_bf16 {vr(Or+16*T,16)}, {vr(Vr+8*u+4*T,4)}, {vr(Pr+4*u,4)}, {vr(Or+16*T,16)}")
    a.label("K3_NEXT")
    a(f"""
    s_add_u32 s53, s53, 0x1000
    s_cmp_lt_u32 s53, {NT32*4096}
    s_cbranch_scc1 K3_TILE
    s_cmp_lg_u32 s56, 0
    s_cbranch_scc1 K3_XDONE
    v_mov_b32 v{T0}, v{M}
    s_nop 1
    v_permlane32_swap_b32 v{M}, v{T0}
    v_max_f32 v{M}, v{M}, v{T0}
    s_mov_b32 s56, 1
    s_branch K3_PASS
    K3_XDONE:
    s_nop 15
    """)
    for i in range(16):
        a(f"v_cvt_pk_bf16_f32 v{PB+i}, v{Or+2*i}, v{Or+2*i+1}")
    for i in range(16, 80):
        a(f"v_mov_b32 v{PB+i}, 0")
    a(f"""
    v_mov_b32 v{LB_}, v{Or+31}
    v_mov_b32 v{T0}, v{Or+31}
    s_nop 1
    v_permlane32_swap_b32 v{T0}, v{LB_}
    s_nop 1
    s_branch K3_GO
    """)
    return kd("fin_kernel", 232)
```

```python
from common import *
import os
E = lambda k, d: int(os.environ.get(k, d))
DIAG = int(os.environ.get("DIAG", "0"))
DIAGOFF = 0x1800000
def stamp(a, reg):
    if DIAG:
        a(f"s_memtime s[{reg}:{reg+1}]")
        a("s_waitcnt lgkmcnt(0)")
def diag_store(a):
    if not DIAG: return
    a("s_mov_b64 exec, -1")
    stamp(a, 76)
    a("s_memrealtime s[78:79]")
    a("s_getreg_b32 s80, hwreg(HW_REG_HW_ID)")
    a("s_getreg_b32 s81, hwreg(HW_REG_XCC_ID)")
    a("s_waitcnt lgkmcnt(0)")
    srd(a, 84, 4, 5, DIAGOFF, 0x100000)
    a("s_lshl_b32 s82, s2, 3")
    a("s_add_u32 s82, s82, s3")
    a("s_lshl_b32 s82, s82, 5")
    for i, r in enumerate([80, 81, 90, 72, 74, 76, 68, 78]):
        a(f"v_mov_b32 v{200+i}, s{r}")
    a("v_mov_b32 v208, 0")
    a("buffer_store_dwordx4 v[200:203], v208, s[84:87], s82 offen")
    a("buffer_store_dwordx4 v[204:207], v208, s[84:87], s82 offen offset:16")
K2_GRID = 245
RING = 16
G = 4
DEPTH = 4
BR = 4
DD = RING - 1 - BR
YOUNG = RING - 2 - 2*BR
NA = E("NA", "77")
NB = NT32 - 4*NA
GFLAG = os.environ.get("GFLAG", "")
DFLAG = os.environ.get("DFLAG", "")
CNT = RING * 4096
LB = CNT + 512
LSTR = 264
K2_LDS = LB + 20480

KA = 2
VA = 6
O = 16
Q = 80
S = 112
P = 144
KF = 160
VF = 192
def rO(X, T): return vr(O + 32*X + 16*T, 16)
def rQ(X, kk): return vr(Q + 16*X + 4*kk, 4)
def rS(X): return vr(S + 16*X, 16)
def rP(X, u): return vr(P + 8*X + 4*u, 4)
def rK(b, kk): return vr(KF + 16*b + 4*kk, 4)
def rV(b, u, T): return vr(VF + 16*b + 8*u + 4*T, 4)

def qk(X, kb, kk):
    c = "0" if kk == 0 else rS(X)
    return f"v_mfma_f32_32x32x16_bf16 {rS(X)}, {rK(kb,kk)}, {rQ(X,kk)}, {c}"
def pv(X, vb, j):
    u, T = j >> 1, j & 1
    return f"v_mfma_f32_32x32x16_bf16 {rO(X,T)}, {rV(vb,u,T)}, {rP(X,u)}, {rO(X,T)}"
def rdK(slot, kb, kk):
    return f"ds_read_b128 {rK(kb,kk)}, v{KA+kk} offset:{slot*4096}"
def rdV(slot, vb, u, T, b):
    d = VF + 16*vb + 8*u + 4*T + 2*b
    return f"ds_read_b64_tr_b16 {vr(d,2)}, v{VA+2*T+b} offset:{slot*4096 + u*2048}"
def ex(X, e): return f"v_exp_f32 v{S+16*X+e}, v{S+16*X+e}"
def cv(X, j): return f"v_cvt_pk_bf16_f32 v{P+8*X+j}, v{S+16*X+2*j}, v{S+16*X+2*j+1}"
if E("PERM", "1"):
    def cv(X, j): return f"v_perm_b32 v{P+8*X+j}, v{S+16*X+2*j+1}, v{S+16*X+2*j}, s28"
def gap_valu(g):
    n = (g + 1) % 16
    Xn, jn = (1 if n < 8 else 0), n & 7
    X, j = (1 if g < 8 else 0), g & 7
    return [ex(Xn, 2*jn), ex(Xn, 2*jn+1), cv(X, j)]
WIN = E("WIN", "0")
if WIN:
    HALF = [("e0 e1 e2"), ("e3 e4 c0 c1"), ("e5 e6 e7"), ("c2 c3"), ("e8 e9 e10"), ("e11 e12 c4 c5"), ("e13 e14 e15"), ("c6 c7")]
    def gap_valu(g):
        X = 1 if g < 8 else 0
        return [ex(X, int(t[1:])) if t[0] == "e" else cv(X, int(t[1:])) for t in HALF[g & 7].split()]
def reads(p):
    r = [rdK((p+1) % RING, (p+1) & 1, kk) for kk in range(4)]
    r += [rdV(p % RING, p & 1, u, T, b) for u in range(2) for T in range(2) for b in range(2)]
    return r

CHECK = sorted({(NA - 1) % RING, (NB - 1) % RING})
def checks_before(n): return sum(1 for r in range(1, n - 1) if r % RING in CHECK)
def round_body(a, p, exit_label):
    kb = p & 1; vb = (p+1) & 1
    mf = [qk(0, kb, k) for k in range(4)] + [pv(0, vb, j) for j in range(4)] + \
         [qk(1, kb, k) for k in range(4)] + [pv(1, vb, j) for j in range(4)]
    if E("ALT", "0"):
        pass
    rd = reads(p)
    nv = rd[:3] + ["s_waitcnt lgkmcnt(3)"] + rd[3:]
    nv += ["s_barrier" if p % BR == BR - 1 else ""]
    if p in CHECK:
        nv += ["s_sub_u32 s12, s12, 1\ns_waitcnt lgkmcnt(8)", f"s_cbranch_scc1 {exit_label}"]
    else:
        nv += ["s_waitcnt lgkmcnt(8)", ""]
    if WIN:
        bar = "s_barrier" if p % BR == BR - 1 else ""
        hi = "s_setprio 3" if WIN == 1 else ""
        lo = "s_setprio 0" if WIN == 1 else ("s_nop 0\ns_nop 0" if WIN == 2 else "")
        nv = [hi, rd[0], rd[1], rd[2] + "\ns_waitcnt lgkmcnt(3)",
              hi, rd[3], rd[4], rd[5] + "\n" + rd[6],
              hi, rd[7], rd[8], rd[9] + "\n" + rd[10],
              hi, rd[11], bar, "s_waitcnt lgkmcnt(8)"]
        if p in CHECK:
            nv[14] += "\ns_sub_u32 s12, s12, 1"
            nv[15] += f"\ns_cbranch_scc1 {exit_label}"
        for g in range(16):
            a(mf[g]); a(nv[g])
            for op in gap_valu(g): a(op)
            if g % 4 == 3: a(lo)
        return
    for g in range(16):
        a(mf[g]); a(nv[g])
        ops = gap_valu(g)
        if E("AL8", "0") and sum(1 for l in nv[g].split("\n") if l.startswith("s_")) % 2:
            ops[0] = ops[0].replace("v_exp_f32", "v_exp_f32_e64")
        for op in ops: a(op)

def gen_attention(a):
    a(f"""
    s_setprio {int(os.environ.get("PRIO_A", "0"))}
    v_and_b32 v1, 63, v0
    v_lshlrev_b32 v10, 4, v1
    s_lshl_b32 s13, s8, 3
    s_lshl_b32 s14, s3, 1
    s_add_u32 s13, s13, s14
    s_lshl_b32 s14, s13, 12
    s_add_u32 s15, s14, 0x1000
    s_mov_b32 s28, 0x07060302
    s_waitcnt lgkmcnt(0)
    """)
    srd(a, 16, 4, 5, QF, NT32*4096)
    for X in range(2):
        for kk in range(4):
            a(f"buffer_load_dwordx4 {rQ(X,kk)}, v10, s[16:19], s{14+X} offen offset:{kk*1024}")
    a(f"""
    v_and_b32 v11, 31, v0            ; row i
    v_lshrrev_b32 v12, 5, v1         ; hi
    v_bfe_u32 v13, v11, 1, 1
    v_lshlrev_b32 v13, 2, v13
    v_bfe_u32 v14, v11, 2, 2
    v_or_b32 v13, v13, v14           ; f(i)
    v_xor_b32 v13, v13, v12          ; hi ^ f
    v_lshlrev_b32 v11, 7, v11
    """)
    for kk in range(4):
        a(f"v_xor_b32 v14, {2*kk}, v13")
        a(f"v_lshl_add_u32 v{KA+kk}, v14, 4, v11")
    a(f"""
    v_bfe_u32 v11, v0, 2, 2          ; rr
    v_lshl_add_u32 v13, v12, 2, v11  ; 4hi+rr
    v_lshlrev_b32 v13, 7, v13
    v_and_b32 v14, 1, v0
    v_lshl_add_u32 v13, v14, 3, v13  ; + (c4&1)*8
    v_bfe_u32 v14, v0, 4, 1
    v_lshlrev_b32 v14, 1, v14
    v_bfe_u32 v15, v0, 1, 1
    v_or_b32 v14, v14, v15           ; 2x + (c4>>1)
    v_lshrrev_b32 v11, 1, v11
    v_lshl_or_b32 v11, v11, 2, v12
    v_xor_b32 v14, v14, v11
    """)
    for T in range(2):
        for b in range(2):
            a(f"v_xor_b32 v15, {(4*T) ^ (2*b)}, v14")
            a(f"v_lshl_add_u32 v{VA+2*T+b}, v15, 4, v13")
            if b: a(f"v_add_u32 v{VA+2*T+b}, {8*128}, v{VA+2*T+b}")
    for i in range(64):
        a(f"v_mov_b32 v{O+i}, 0")
    a(f"""
    s_mul_i32 s20, s9, 392
    s_add_u32 s20, s20, s13
    s_lshl_b32 s20, s20, 12
    s_add_u32 s21, s20, 0x1000
    s_mul_i32 s22, s9, {QROWS*4}
    s_lshl_b32 s23, s13, 7
    s_add_u32 s22, s22, s23
    v_and_b32 v11, 31, v0
    v_lshlrev_b32 v11, 2, v11
    """)
    srd(a, 24, 4, 5, PL, 5*QROWS*4)
    a("s_cmp_eq_u32 s9, 4")
    a(f"s_cselect_b32 s12, {checks_before(NB)}, {checks_before(NA)}")
    a("s_barrier")
    for kk in range(4): a(rdK(0, 0, kk))
    a("s_waitcnt vmcnt(0) lgkmcnt(0)")
    srd(a, 16, 4, 5, PO, 5*392*4096)
    rd = reads(0)
    for k in range(4):
        a(qk(0, 0, k)); a(rd[k])
    for k in range(4):
        a(qk(1, 0, k)); a(rd[4+2*k]); a(rd[5+2*k])
    if BR == 1: a("s_barrier")
    if not WIN:
        for op in gap_valu(7)[:2]: a(op)
    for g in range(8, 16):
        for op in gap_valu(g): a(op)
    a("s_waitcnt lgkmcnt(0)")
    stamp(a, 72)
    a("s_branch K2_R1")
    a.raw(".p2align 6")
    a.label("K2_R0")
    for p in range(RING):
        if p == 1: a.label("K2_R1")
        round_body(a, p, f"K2_E{p&1}")
    a("s_branch K2_R0")
    def pack_store(X, dst):
        ops = []
        for T in range(2):
            for i in range(8):
                ops.append(f"v_cvt_pk_bf16_f32 v{dst+8*T+i}, v{O+32*X+16*T+2*i}, v{O+32*X+16*T+2*i+1}")
                if i % 4 == 3:
                    ops.append(f"buffer_store_dwordx4 {vr(dst+8*T+i-3,4)}, v10, s[16:19], s{20+X} offen offset:{(2*T+i//4)*1024}")
        return ops
    for par in range(2):
        a.label(f"K2_E{par}")
        stamp(a, 74)
        a("s_waitcnt lgkmcnt(0)")
        for op in gap_valu(15): a(op)
        vb = par
        for g in range(8):
            if g < 4: a(pv(0, vb, g))
            for op in (gap_valu(g) if (g < 7 or WIN) else gap_valu(g)[2:]): a(op)
            if g == 4: a(pv(1, vb, 0))
            if g == 5: a(pv(1, vb, 1))
        ps = pack_store(0, S)
        a(pv(1, vb, 2))
        for op in ps[:5]: a(op)
        a(pv(1, vb, 3))
        for op in ps[5:]: a(op)
        if par == 0: a("s_branch K2_EPI")
    a.label("K2_EPI")
    for op in pack_store(1, KF): a(op)
    a("s_mov_b32 exec_lo, 0")
    for X in range(2):
        a(f"buffer_store_dword v{O+32*X+31}, v11, s[24:27], s22 offen offset:{X*128}")
    diag_store(a)
    a("s_endpgm")

VDMA = 2; VCNT = 3; VSEG = 4; VLP = 5; VLP1 = 6; VHL = 7; VDI = 8
VTWO = 10; VT = 11
IDX = 16
A16 = 24
A32 = 28
RK = 36
AD = 44
VLA = 52
VNB = 54
EN = 56
DS_ = 104
NSET = DEPTH + 1

class VM:
    def __init__(self): self.q = []; self.tile = 0
    def issue(self, tag): self.q.append(tag)
    def after(self, tag):
        i = len(self.q) - 1 - self.q[::-1].index(tag)
        return len(self.q) - 1 - i
    def copy(self):
        v = VM(); v.q = list(self.q); v.tile = self.tile; return v

def dma(a, vm=None):
    a(f"""
    s_and_b32 s41, s14, {hex(RING*4096-1)}
    s_add_u32 m0, s41, s15
    s_nop 0
    buffer_load_dwordx4 v{VDMA}, s[16:19], s14 offen lds{DFLAG}
    s_add_u32 s14, s14, 0x1000
    """)
    if vm is not None:
        vm.issue(("t", vm.tile)); vm.tile += 1
def dma_slice(a, vm, r):
    n = 0
    while vm.tile <= r + DD and n < 2:
        dma(a, vm); n += 1
def dyn_end(a, n, label, mid=None):
    a(f"s_cmp_lg_u32 s12, s70")
    if mid: mid()
    a(f"s_cbranch_scc1 {label}")
    if n is not None: a(f"s_waitcnt vmcnt({min(n, 63)})")
    a("s_barrier")
    a(f"s_add_u32 s70, s70, {BR}")
    a(f"s_cmp_ge_u32 s70, s11")
    a(f"s_cselect_b32 s70, -1, s70")
    a.label(label)
    a("s_add_u32 s12, s12, 1")

def flush1(a, i):
    a(f"v_add_u32_sdwa v{A32+2*i}, v{A16+i}, v{A32+2*i} dst_sel:DWORD dst_unused:UNUSED_PAD src0_sel:WORD_0 src1_sel:DWORD")
    a(f"v_add_u32_sdwa v{A32+2*i+1}, v{A16+i}, v{A32+2*i+1} dst_sel:DWORD dst_unused:UNUSED_PAD src0_sel:WORD_1 src1_sel:DWORD")
def finalize(a, rho, from_int=True):
    if from_int:
        for i in range(4): flush1(a, i)
        for i in range(8):
            a(f"v_cvt_f32_i32 v{A32+i}, v{A32+i}")
    for i in range(8):
        a(f"v_mul_f32 v{A32+i}, v{A32+i}, v{VDI+rho}")
    for i in range(4):
        a(f"v_cvt_pk_bf16_f32 v{VT+1+i}, v{A32+2*i}, v{A32+2*i+1}")
    a(f"buffer_store_dwordx4 {vr(VT+1,4)}, v{VHL}, s[28:31], {'s42' if rho else '0'} offen")
    if from_int and rho == 0:
        for i in range(8):
            a(f"v_mov_b32 v{A32+i}, v{VNB}")
        for i in range(4):
            a(f"v_mov_b32 v{A16+i}, 0")

def gen_aux(a):
    vm = VM()
    a.label("K2_AUX")
    a(f"""
    s_setprio {E("PRIO_X", "3")}
    s_sub_u32 s13, s3, 4
    s_lshl_b32 s15, s13, 10
    v_and_b32 v1, 63, v0
    v_lshlrev_b32 v{VDMA}, 4, v1
    v_add_u32 v{VDMA}, s15, v{VDMA}
    s_lshl_b32 s41, s10, 12
    s_add_u32 s41, s41, {hex(HI)}
    s_lshl_b32 s42, s11, 12
    s_mov_b32 s14, 0
    s_mov_b32 s40, 0
    v_subrev_u32 v{VT}, 256, v0           ; ta
    s_mov_b32 s43, {CHUNK_B}
    v_mul_lo_u32 v{VSEG}, v{VT}, s43
    s_lshl_b32 s43, s64, 2
    s_waitcnt lgkmcnt(0)
    """)
    srd(a, 16, 4, 5, "s41", "s42")
    for i in range(BR + 1): dma(a, vm)
    vm_idle = vm.copy()
    a(f"s_cmp_ge_u32 s64, {NBIN}")
    a(f"s_cbranch_scc1 K2_IDLE0")
    srd(a, 20, 4, 5, BINS, NCHUNK*CHUNK_B)
    a(f"buffer_load_dword v{VCNT}, v{VSEG}, s[20:23], s43 offen"); vm.issue("desc")
    srd(a, 24, 4, 5, T16, N, stride=128)
    a(f"s_lshl_b32 s41, s64, 13")
    a(f"s_add_u32 s41, s41, {hex(HL)}")
    srd(a, 28, 4, 5, "s41", 8192)
    srd(a, 32, 6, 7, 0, N*2)
    a(f"""
    v_mov_b32 v{VT+1}, -1
    v_mov_b32 v{VT+2}, -1
    v_mov_b32 v{VT+3}, -1
    v_mov_b32 v{VT+4}, -1
    v_lshlrev_b32 v{VT}, 4, v{VT}
    v_add_u32 v{VT}, {LB}, v{VT}
    """)
    for i in range(5):
        a(f"ds_write_b128 v{VT}, {vr(VT+1,4)} offset:{4096*i}")
    a(f"""
    v_mul_u32_u24 v{VT+1}, {LSTR}, v1
    v_add_u32 v{VT+1}, {LB}, v{VT+1}
    v_lshlrev_b32 v{VLA}, 2, v1
    v_add_u32 v{VLA}, {CNT}, v{VLA}
    ds_write_b32 v{VLA}, v{VT+1}
    v_mov_b32 v{VTWO}, 2
    v_mov_b32 v{VLA+1}, {CNT}
    v_lshrrev_b32 v{VT}, 3, v1            ; g
    s_lshl_b32 s41, s13, 3
    v_add_u32 v{VT}, s41, v{VT}
    v_mul_u32_u24 v{VLP}, {LSTR}, v{VT}
    v_add_u32 v{VLP}, {LB}, v{VLP}
    v_add_u32 v{VLP1}, {32*LSTR}, v{VLP}
    v_and_b32 v{VT+1}, 7, v1
    v_lshlrev_b32 v{VT+1}, 4, v{VT+1}     ; c*16
    v_lshl_add_u32 v{VHL}, v{VT}, 7, v{VT+1}
    s_lshl_b32 s41, s64, 6
    v_add_lshl_u32 v{VDI+1}, s41, v{VT}, 1
    buffer_load_ushort v{VDI}, v{VDI+1}, s[32:35], 0 offen
    buffer_load_ushort v{VDI+1}, v{VDI+1}, s[32:35], 0 offen offset:64
    """)
    vm.issue("deg"); vm.issue("deg")
    for k in range(G):
        a(f"v_mov_b32 v{IDX+2*k+1}, v{VT+1}")
    for i in range(4): a(f"v_mov_b32 v{A16+i}, 0")
    for i in range(4*G, 4*G*NSET): a(f"v_mov_b32 v{DS_+i}, 0")
    a(f"""
    s_movk_i32 s42, 0x1000
    s_mov_b32 s65, 0x0c060c02
    s_waitcnt vmcnt({vm.after(("t", BR))}) lgkmcnt(0)
    s_barrier
    """)
    r = 0
    def super_dma():
        for k in range(BR): dma_slice(a, vm, r + k)
    def super_end():
        nonlocal r
        r += BR
        a(f"s_waitcnt vmcnt({min(63, vm.after(('t', r + BR)))})")
        a("s_barrier")
    def to_dynamic():
        a(f"s_mov_b32 s12, {r}")
        a(f"s_mov_b32 s70, {r + (BR - 1 - r) % BR}")
    super_dma()
    a(f"""
    s_waitcnt vmcnt({vm.after("desc")})
    v_and_b32 v{VT}, 0xffff, v{VCNT}
    v_lshl_add_u32 v{VSEG}, v{VT}, 2, v{VSEG}
    v_lshrrev_b32 v{VCNT}, 16, v{VCNT}
    """)
    for k in range(12):
        if k >= 2:
            a(f"v_cmp_lt_u32 vcc, {4*k}, v{VCNT}")
            a(f"s_or_b64 exec, vcc, 1")
        a(f"buffer_load_dwordx4 {vr(EN+4*k,4)}, v{VSEG}, s[20:23], 0 offen offset:{1024+16*k}"); vm.issue(("seg", k))
    a(f"""
    s_mov_b64 exec, -1
    v_cmp_lt_u32 vcc, 48, v{VCNT}
    s_and_saveexec_b64 s[48:49], vcc
    v_mov_b32 v{VT+1}, 0x10000
    ds_add_u32 v{VLA+1}, v{VT+1}
    s_mov_b64 exec, -1
    s_mov_b64 s[62:63], -1
    """)
    super_end()
    PER = E("INS", "12")
    if E("NOINS", "0"): a("s_mov_b64 s[62:63], 0")
    for sl in range(48 // PER):
        super_dma()
        a(f"s_waitcnt vmcnt({vm.after(('seg', (sl*PER + PER - 1) // 4))})")
        a("s_mov_b64 exec, s[62:63]")
        for j in range(PER):
            e = sl*PER + j
            a(f"v_cmpx_lt_u32 s[62:63], {e}, v{VCNT}")
            if j % 2 == 0: a(f"s_cbranch_execz K2_INS{sl}")
            a(f"v_perm_b32 v{AD}, v{VLA+1}, v{EN+e}, s65")
            a(f"ds_add_rtn_u32 v{RK}, v{AD}, v{VTWO}")
            a(f"s_waitcnt lgkmcnt(0)")
            a(f"v_min_u32 v{RK}, {LB+64*LSTR}, v{RK}")
            a(f"ds_write_b16 v{RK}, v{EN+e}")
        a.label(f"K2_INS{sl}")
        a("s_mov_b64 exec, -1")
        a("s_waitcnt lgkmcnt(0)")
        super_end()
    dma_slice(a, vm, r)
    a(f"""
    ds_read_b32 v{VT}, v{VLA}
    v_lshrrev_b32 v{VT+2}, 3, v1
    s_lshl_b32 s41, s13, 5
    s_add_u32 s41, s41, {CNT}
    v_lshl_add_u32 v{VT+2}, v{VT+2}, 2, s41
    ds_read_b32 v{VT+3}, v{VT+2}
    ds_read_b32 v{VNB}, v{VT+2} offset:128
    ds_read_u16 v{IDX}, v{VLP}
    v_mul_u32_u24 v{VT+1}, {LSTR}, v1
    v_lshlrev_b32 v{VDI}, 16, v{VDI}
    v_lshlrev_b32 v{VDI+1}, 16, v{VDI+1}
    v_mul_f32 v{VDI}, {hex(f32bits(1/TSC))}, v{VDI}
    v_mul_f32 v{VDI+1}, {hex(f32bits(1/TSC))}, v{VDI+1}
    s_waitcnt lgkmcnt(1)
    v_sub_u32 v{VT}, v{VT}, v{VT+1}
    v_subrev_u32 v{VT}, {LB}, v{VT}
    v_cmp_lt_u32 vcc, 256, v{VT}
    s_cmp_lg_u64 vcc, 0
    s_cselect_b32 s40, 1, 0
    v_sub_u32 v{VT+3}, v{VLP}, v{VT+3}    ; -2*count
    v_sub_u32 v{VNB}, v{VLP1}, v{VNB}
    v_mul_i32_i24 v{VT+3}, {TBIAS//2}, v{VT+3}
    v_mul_i32_i24 v{VNB}, {TBIAS//2}, v{VNB}
    """)
    for i in range(8): a(f"v_mov_b32 v{A32+i}, v{VT+3}")
    for sh in (1, 2, 4):
        a(f"v_max_u32_dpp v{VT}, v{VT}, v{VT} row_shr:{sh} row_mask:0xf bank_mask:0xf bound_ctrl:0")
    a(f"""
    s_lshl_b32 s41, s13, 3
    s_add_u32 s41, s41, 7
    s_add_u32 s43, s41, 32
    v_readlane_b32 s36, v{VT}, s41
    v_readlane_b32 s37, v{VT}, s43
    s_add_u32 s36, s36, 7
    s_lshr_b32 s36, s36, 3
    s_max_u32 s36, s36, 1
    s_add_u32 s37, s37, 7
    s_lshr_b32 s37, s37, 3
    s_max_u32 s37, s37, 1
    s_add_u32 s37, s37, s36
    s_mov_b32 s38, 0
    s_mov_b32 s39, {-DEPTH}
    """)
    assert vm.tile == r + DD + 1, (vm.tile, r)
    assert YOUNG - 1 >= DEPTH - 1
    a(f"s_waitcnt vmcnt({vm.after(('t', min(vm.tile - 1, r + DEPTH + BR + 1)))})")
    r += 1
    to_dynamic()
    a("s_cmp_lg_u32 s40, 0")
    a("s_cbranch_scc1 K2_IDLE")
    stamp(a, 72)
    a.label("K2_G")
    assert NSET >= 5 and NSET * G <= 20
    for s in range(NSET):
        c = DS_ + 4*G*((s+1) % NSET)
        adds = []
        for h in range(2):
            for i in range(4):
                acc = "0" if (h == 0 and s >= 1 and i == s - 1) else f"v{A16+i}"
                adds.append(f"v_add3_u32 v{A16+i}, v{c+8*h+i}, v{c+8*h+4+i}, {acc}")
        nxt = (s + 1) % NSET
        if E("NOADD", "0"): adds = [""] * 8
        ld = [f"buffer_load_dwordx4 {vr(DS_+4*G*s+4*k,4)}, {vr(IDX+2*(k&1),2)}, s[24:27], 0 idxen offen{GFLAG}" for k in range(G)]
        if E("NOLD", "0"): ld = [f"buffer_load_dword v{DS_+4*G*s+4*k}, v{VTWO}, s[32:35], s70 offen" for k in range(G)]
        rd = [f"ds_read_u16 v{IDX+2*((k+1)&1)}, v{VLP} offset:{2*G*s+2*k+2}" for k in range(G-1)]
        rd.append(f"ds_read_u16 v{IDX}, v{VLP} offset:{2*G*nxt}")
        a(f"""
        s_waitcnt vmcnt({(DEPTH-1)*(G+1)}) lgkmcnt(0)
        {rd[0]}
        {adds[0]}
        {ld[0]}
        s_and_b32 s41, s14, {hex(RING*4096-1)}
        s_add_u32 m0, s41, s15
        {adds[1]}
        s_waitcnt lgkmcnt(0)
        {rd[1]}
        {adds[2]}
        {ld[1]}
        s_add_u32 s38, s38, 1
        {adds[3]}
        s_waitcnt lgkmcnt(0)
        {rd[2]}
        {adds[4]}
        {ld[2]}
        s_cmp_lg_u32 s38, s36
        {adds[5]}
        """)
        if nxt == 0: a(f"v_add_u32 v{VLP}, {2*G*NSET}, v{VLP}")
        a(f"""
        s_cbranch_scc1 K2_GA{s}
        v_subrev_u32 v{VLP}, {2*G*nxt}, v{VLP1}
        K2_GA{s}:
        s_waitcnt lgkmcnt(0)
        {rd[3]}
        {adds[6]}
        {ld[3]}
        s_add_u32 s39, s39, 1
        s_cmp_eq_u32 s39, s37
        {adds[7]}
        buffer_load_dwordx4 v{VDMA}, s[16:19], s14 offen lds{DFLAG}
        s_add_u32 s14, s14, 0x1000
        s_cmp_eq_u32 s39, s37
        s_cbranch_scc1 K2_GDONE
        s_cmp_lg_u32 s39, s36
        s_cbranch_scc1 K2_GB{s}
        """)
        finalize(a, 0)
        a.label(f"K2_GB{s}")
        dyn_end(a, None, f"K2_GC{s}", (lambda: flush1(a, s)) if s < 4 else None)
    a("s_branch K2_G")
    a.label("K2_GDONE")
    stamp(a, 74)
    finalize(a, 1)
    dyn_end(a, YOUNG, "K2_GCX")
    a("s_branch K2_IDLE")
    a.label("K2_IDLE0")
    vm = vm_idle; r = 0
    a(f"s_waitcnt vmcnt(0)")
    a("s_barrier")
    while vm.tile < r + DD:
        super_dma(); super_end()
    assert vm.tile == r + DD
    to_dynamic()
    a.label("K2_IDLE")
    a("s_cmp_eq_u32 s70, -1")
    a("s_cbranch_scc1 K2_AEND")
    dma(a)
    dyn_end(a, YOUNG, "K2_IC")
    a("s_branch K2_IDLE")
    a.label("K2_AEND")
    diag_store(a)
    a("s_cmp_eq_u32 s40, 0")
    a("s_cbranch_scc1 K2_END")
    gen_slow(a)

def gen_slow(a):
    ACC = LB
    a(f"""
    s_waitcnt vmcnt(0) lgkmcnt(0)
    s_barrier
    v_subrev_u32 v{VT}, 256, v0
    v_lshlrev_b32 v{VT}, 4, v{VT}
    v_add_u32 v{VT}, {ACC}, v{VT}
    v_mov_b32 v{VT+1}, 0
    v_mov_b32 v{VT+2}, 0
    v_mov_b32 v{VT+3}, 0
    v_mov_b32 v{VT+4}, 0
    """)
    for i in range(4):
        a(f"ds_write_b128 v{VT}, {vr(VT+1,4)} offset:{4096*i}")
    a(f"""
    s_waitcnt lgkmcnt(0)
    s_barrier
    s_mov_b32 s44, s13
    v_lshrrev_b32 v{RK}, 3, v1         ; g
    v_and_b32 v{RK+1}, 7, v1
    v_lshlrev_b32 v{RK+1}, 5, v{RK+1}
    v_add_u32 v{RK+1}, {ACC}, v{RK+1}
    K2_S0:
    s_mul_i32 s45, s44, {CHUNK_B}
    s_lshl_b32 s46, s64, 2
    s_add_u32 s46, s46, s45
    v_mov_b32 v{VT}, 0
    buffer_load_dword v{VT+1}, v{VT}, s[20:23], s46 offen
    s_waitcnt vmcnt(0)
    v_readfirstlane_b32 s46, v{VT+1}
    s_lshr_b32 s47, s46, 16            ; count
    s_and_b32 s46, s46, 0xffff
    s_lshl_b32 s46, s46, 2
    s_add_u32 s45, s45, s46
    v_mov_b32 v{RK+2}, v{RK}
    K2_S1:
    v_cmp_gt_u32 vcc, s47, v{RK+2}
    s_and_saveexec_b64 s[48:49], vcc
    s_cbranch_execz K2_S2
    v_lshlrev_b32 v{VT}, 2, v{RK+2}
    buffer_load_dword v{VT+1}, v{VT}, s[20:23], s45 offen offset:1024
    s_waitcnt vmcnt(0)
    v_and_b32 v{IDX}, 0xffff, v{VT+1}
    buffer_load_dwordx4 {vr(DS_,4)}, {vr(IDX,2)}, s[24:27], 0 idxen offen
    v_bfe_u32 v{VT}, v{VT+1}, 18, 6
    v_lshl_add_u32 v{VT}, v{VT}, 8, v{RK+1}
    s_waitcnt vmcnt(0)
    """)
    for i in range(4):
        a(f"v_cvt_f32_u32_sdwa v{A32+2*i}, v{DS_+i} dst_sel:DWORD dst_unused:UNUSED_PAD src0_sel:WORD_0")
        a(f"v_cvt_f32_u32_sdwa v{A32+2*i+1}, v{DS_+i} dst_sel:DWORD dst_unused:UNUSED_PAD src0_sel:WORD_1")
    for i in range(8):
        a(f"v_subrev_f32 v{A32+i}, {hex(f32bits(float(TBIAS)))}, v{A32+i}")
    for i in range(8):
        a(f"ds_add_f32 v{VT}, v{A32+i} offset:{4*i}")
    a(f"""
    s_mov_b64 exec, -1
    v_add_u32 v{RK+2}, 8, v{RK+2}
    s_branch K2_S1
    K2_S2:
    s_mov_b64 exec, -1
    s_add_u32 s44, s44, 4
    s_cmp_lt_u32 s44, {NCHUNK}
    s_cbranch_scc1 K2_S0
    s_waitcnt lgkmcnt(0)
    s_barrier
    v_lshlrev_b32 v{VT}, 1, v{VHL}      ; local*256 + c*32
    v_add_u32 v{VT}, {ACC}, v{VT}
    """)
    for rho in range(2):
        a(f"ds_read_b128 {vr(A32,4)}, v{VT} offset:{8192*rho}")
        a(f"ds_read_b128 {vr(A32+4,4)}, v{VT} offset:{8192*rho+16}")
        a("s_waitcnt lgkmcnt(0)")
        finalize(a, rho, from_int=False)

def gen_k2(a):
    header(a, "attn_kernel")
    a(f"""
    s_cmp_ge_u32 s2, {K2_GRID}
    s_cbranch_scc1 K2_END
    s_load_dwordx2 s[4:5], s[0:1], 88
    s_load_dwordx2 s[6:7], s[0:1], 24
    """)
    if DIAG:
        a("s_memrealtime s[68:69]")
        stamp(a, 90)
        a("s_mov_b32 s72, 0")
        a("s_mov_b32 s74, 0")
    a(f"""
    v_lshrrev_b32 v1, 6, v0
    s_and_b32 s66, s2, 7
    s_lshr_b32 s67, s2, 3               ; j
    v_readfirstlane_b32 s3, v1
    s_mul_i32 s8, s67, 52
    s_lshr_b32 s8, s8, 8                ; j / 5
    s_mul_i32 s9, s8, 5
    s_sub_u32 s9, s67, s9               ; split = j % 5
    s_mul_i32 s64, s66, 24
    s_lshl_b32 s67, s8, 2
    s_add_u32 s64, s64, s67
    s_lshl_b32 s8, s8, 3
    s_add_u32 s8, s8, s66               ; q block
    s_cmp_ge_u32 s2, 240
    s_cselect_b32 s8, 48, s8
    s_cselect_b32 s9, s66, s9
    s_cselect_b32 s64, 192, s64
    s_add_u32 s64, s64, s9
    s_mul_i32 s10, s9, {NA}
    s_cmp_eq_u32 s9, 4
    s_cselect_b32 s64, 255, s64
    {"s_mov_b32 s64, 255" if E("NOBINS", "0") else ""}
    s_movk_i32 s11, {NA}
    s_cselect_b32 s11, {NB}, s11
    s_cmp_ge_u32 s3, 4
    s_cbranch_scc1 K2_AUX
    """)
    gen_attention(a)
    gen_aux(a)
    a.label("K2_END")
    a("s_endpgm")
    return kd("attn_kernel", max(224, DS_ + 4*G*NSET))
```
